```python
import torch

def _softmax(x, axis=-1):
    return torch.softmax(x, dim=axis)
def _gelu(x):
    return torch.nn.functional.gelu(x, approximate="tanh")
def _silu(x):
    return torch.nn.functional.silu(x)
def _sigmoid(x):
    return torch.sigmoid(x)
def _layernorm(x, axis=-1, eps=1e-5):
    m = x.mean(dim=axis, keepdim=True)
    v = x.var(dim=axis, keepdim=True, unbiased=False)
    return (x - m) / torch.sqrt(v + eps)
def _scatter_add(tgt, idx, src, axis=0):
    return tgt.clone().index_add_(axis, idx, src)
def _segment_sum(src, seg, n):
    out = torch.zeros((n,) + src.shape[1:], dtype=src.dtype)
    return out.index_add_(0, seg, src)
def _pad(x, pw):
    flat = tuple(v for pair in reversed(pw) for v in pair)
    return torch.nn.functional.pad(x, flat)

kernel_name = 'concat_heads__linear_kernel_hedgehog__ssm_conv_s4d__prompt'

def setup_inputs():

    _w = (lambda a: (lambda t: t.to(torch.bfloat16) if t.is_floating_point() else t)(torch.as_tensor(a)))
    def _A_setup():
        B, S, D, H = 1, 2048, 1024, 32
        Dh = D // H
        return {
            "x": _w((lambda *s: torch.randn(*s, dtype=torch.bfloat16) * 0.4)(B, S, D)),
            "wqkv": _w((lambda *s: torch.randn(*s, dtype=torch.bfloat16) * 0.4)(D, 3 * D)),
            "w_phi": _w((lambda *s: torch.randn(*s, dtype=torch.bfloat16) * 0.4)(H, Dh, Dh) * (Dh ** -0.5)),
            "wo": _w((lambda *s: torch.randn(*s, dtype=torch.bfloat16) * 0.05)(D, D)),
        }
    _A_in = _A_setup()

    def _B_setup():
        Bsz, L, D, N = 1, 2048, 1024, 128
        return {
            "u": _w((lambda *s: torch.randn(*s, dtype=torch.bfloat16) * 0.05)(Bsz, L, D)),
            "log_A_real": _w((lambda *s: torch.randn(*s, dtype=torch.bfloat16) * 3.2)(D, N) * 0.5),
            "A_imag": _w((lambda *s: torch.randn(*s, dtype=torch.bfloat16) * 0.2)(D, N) * 3.14),
            "C_real": _w((lambda *s: torch.randn(*s, dtype=torch.bfloat16) * 3.2)(D, N) / N ** 0.5),
            "C_imag": _w((lambda *s: torch.randn(*s, dtype=torch.bfloat16) * 3.2)(D, N) / N ** 0.5),
            "log_dt": _w((lambda *s: torch.randn(*s, dtype=torch.bfloat16) * 0.2)(D) * 0.5 - 4.0),
            "D_skip": _w((lambda *s: torch.randn(*s, dtype=torch.bfloat16) * 0.2)(D)),
        }
    _B_in = _B_setup()

    return {
        "A_x": _A_in["x"],
        "A_wqkv": _A_in["wqkv"],
        "A_w_phi": _A_in["w_phi"],
        "A_wo": _A_in["wo"],
        "B_u": _B_in["u"],
        "B_log_A_real": _B_in["log_A_real"],
        "B_A_imag": _B_in["A_imag"],
        "B_C_real": _B_in["C_real"],
        "B_C_imag": _B_in["C_imag"],
        "B_log_dt": _B_in["log_dt"],
        "B_D_skip": _B_in["D_skip"],
    }

def reference(A_x, A_wqkv, A_w_phi, A_wo, B_u, B_log_A_real, B_A_imag, B_C_real, B_C_imag, B_log_dt, B_D_skip):
    def _A_ref(x, wqkv, w_phi, wo):
        B, S, D = x.shape
        H = 32; Dh = D // H
        qkv = (lambda x, *d: x.permute(*d))((x @ wqkv).reshape(B, S, 3, H, Dh), 2, 0, 3, 1, 4)
        q, k, v = qkv[0], qkv[1], qkv[2]
        pq = torch.einsum("bhsd,hdf->bhsf", q, w_phi)
        pk = torch.einsum("bhsd,hdf->bhsf", k, w_phi)
        phi_q = torch.concatenate([_softmax(pq, axis=-1), _softmax(-pq, axis=-1)], axis=-1)
        phi_k = torch.concatenate([_softmax(pk, axis=-1), _softmax(-pk, axis=-1)], axis=-1)
        kv = torch.einsum("bhsf,bhsd->bhfd", phi_k, v)
        z  = torch.einsum("bhsf->bhf", phi_k)
        num = torch.einsum("bhqf,bhfd->bhqd", phi_q, kv)
        den = torch.einsum("bhqf,bhf->bhq", phi_q, z)[..., None] + 1e-6
        o = num / den
        return (lambda x, *d: x.permute(*d))(o, 0, 2, 1, 3).reshape(B, S, D) @ wo

    def _B_ref(u, log_A_real, A_imag, C_real, C_imag, log_dt, D_skip):
        L = u.shape[1]
        dt = torch.exp(log_dt)
        A = -torch.exp(log_A_real) + 1j * A_imag
        C = (C_real + 1j * C_imag) * dt[:, None]
        pos = (lambda x, dt: x.to(dt))(torch.arange(L), log_dt.dtype)
        P = torch.exp((A * dt[:, None])[:, :, None] * pos[None, None, :])
        K = 2.0 * torch.einsum("dn,dnl->dl", C, P).real
        L2 = 2 * L
        u_t = (lambda x, *d: x.permute(*d))(u, 0, 2, 1)
        Kf = (lambda x, *a, **k: torch.fft.rfft(x.float(), *a, **k))(K, L2)
        Uf = (lambda x, *a, **k: torch.fft.rfft(x.float(), *a, **k))(u_t, L2)
        y = (lambda x, *a, **k: torch.fft.irfft(x, *a, **k).to(torch.bfloat16))(Uf * Kf[None, :, :], L2)[:, :, :L]
        y = (lambda x, *d: x.permute(*d))(y, 0, 2, 1)
        return y + u * D_skip[None, None, :]

    a = _A_ref(A_x, A_wqkv, A_w_phi, A_wo)
    b = _B_ref(B_u, B_log_A_real, B_A_imag, B_C_real, B_C_imag, B_log_dt, B_D_skip)
    return torch.concatenate([a, b], axis=-1)
```

```python
import re, subprocess, os, pickle

TRANS = ('v_exp_f32', 'v_log_f32', 'v_rcp_f32', 'v_rsq_f32', 'v_sqrt_f32', 'v_sin_f32', 'v_cos_f32', 'v_rcp_iflag_f32')
_REG = re.compile(r'(?<![\w.])([vas])(?:(\d+)|\[(\d+):(\d+)\])(?![\w])')


def regs_of(tok):
    out = []
    for m in _REG.finditer(tok):
        k = m.group(1)
        if m.group(2) is not None:
            out.append((k, int(m.group(2))))
        else:
            out += [(k, i) for i in range(int(m.group(3)), int(m.group(4)) + 1)]
    for nm in ('vcc', 'exec', 'm0'):
        if re.search(r'(?<![\w])' + nm + r'(_lo|_hi)?(?![\w])', tok):
            out.append((nm, 0))
    return out


def split_ops(s):
    ops, depth, cur = [], 0, ''
    for ch in s:
        if ch in '[(':
            depth += 1
        if ch in '])':
            depth -= 1
        if ch == ',' and depth == 0:
            ops.append(cur.strip()); cur = ''
        else:
            cur += ch
    if cur.strip():
        ops.append(cur.strip())
    return ops


class I:
    __slots__ = ('text', 'op', 'defs', 'uses', 'kind', 'srcc', 'srcab', 'mr', 'mw', 'passes', 'lds_dma', 'fence',
                 'size', 'sdata', 'prio', 'lat', 'tag', 'nocount')

    def __init__(self, text, mr=(), mw=(), fence=False, prio=0, lat=None, tag=None, nocount=False):
        self.nocount = nocount
        self.text = text.strip()
        self.mr = set(mr); self.mw = set(mw); self.fence = fence; self.prio = prio; self.lat = lat; self.tag = tag
        self.srcc = set(); self.srcab = set(); self.passes = 0; self.lds_dma = False; self.size = None
        self.sdata = set()
        t = self.text.split(';')[0].strip()
        if t.endswith(':') or t.startswith('.') or t == '':
            self.op = 'label'; self.kind = 'label'; self.defs = set(); self.uses = set(); self.fence = True
            self.size = 0
            return
        sp = t.split(None, 1)
        op = self.op = sp[0]
        ops = split_ops(sp[1]) if len(sp) > 1 else []
        base = re.sub(r'_(e32|e64|dpp|sdwa)$', '', op)
        R = [regs_of(o) for o in ops]
        defs, uses = [], []
        allr = lambda a: [r for x in a for r in x]
        if op.startswith('v_mfma'):
            self.kind = 'mfma'
            defs = R[0]; uses = allr(R[1:4])
            self.srcc = set(R[3]); self.srcab = set(R[1] + R[2])
            self.passes = 8 if '32x32' in op else 4
            uses.append(('exec', 0))
        elif op.startswith('v_'):
            self.kind = 'trans' if base in TRANS else 'valu'
            if base.startswith('v_cmpx'):
                defs = R[0] + [('exec', 0)]; uses = allr(R[1:])
            elif base.startswith('v_permlane') and 'swap' in base:
                defs = R[0] + R[1]; uses = R[0] + R[1]
            elif base in ('v_swap_b32',):
                defs = R[0] + R[1]; uses = R[0] + R[1]
            elif base in ('v_fmac_f32', 'v_dot2c_f32_bf16', 'v_pk_fmac_f16', 'v_writelane_b32') or '_dpp' in op or 'row_' in t or 'quad_perm' in t:
                defs = R[0]; uses = allr(R)
            elif base in ('v_add_co_u32', 'v_sub_co_u32', 'v_addc_co_u32', 'v_subb_co_u32', 'v_div_scale_f32', 'v_mad_u64_u32'):
                defs = R[0] + R[1]; uses = allr(R[2:])
            elif base == 'v_nop':
                pass
            else:
                defs = R[0]; uses = allr(R[1:])
                if 'UNUSED_PRESERVE' in t:
                    uses += R[0]
            if base not in ('v_readlane_b32', 'v_writelane_b32'):
                uses.append(('exec', 0))
        elif op.startswith('ds_'):
            self.kind = 'ds'
            if op.startswith('ds_read') or op.startswith('ds_bpermute') or op.startswith('ds_permute') or op.startswith('ds_swizzle') or '_rtn' in op:
                defs = R[0]; uses = allr(R[1:])
                if 'd16' in op:
                    uses += R[0]
            else:
                uses = allr(R)
            uses.append(('exec', 0))
        elif op.startswith('buffer_') or op.startswith('global_'):
            self.kind = 'vmem'
            lds = re.search(r'(?<![\w])lds(?![\w])', t) is not None or 'load_lds' in op
            if op in ('buffer_wbl2', 'buffer_inv'):
                self.fence = True
            elif lds:
                self.lds_dma = True; uses = allr(R) + [('m0', 0)]
            elif '_load' in op:
                defs = R[0]; uses = allr(R[1:])
                if 'd16' in op:
                    uses += R[0]
            elif '_atomic' in op and re.search(r'(?<![\w])sc0(?![\w])', t):
                defs = R[0]; uses = allr(R)
            else:
                uses = allr(R)
                if re.search(r'x[34]$', op):
                    self.sdata = set(R[0] if op.startswith('buffer_') else R[1])
            uses.append(('exec', 0))
        elif op.startswith('s_load') or op.startswith('s_mem') or op.startswith('s_buffer_load'):
            self.kind = 'smem'; defs = R[0]; uses = allr(R[1:])
        elif op == 's_waitcnt':
            self.kind = 'wait'; self.fence = True
        elif op == 's_barrier':
            self.kind = 'barrier'; self.fence = True
        elif op == 's_nop':
            self.kind = 'nop'
        elif op in ('s_branch', 's_endpgm', 's_cbranch_scc0', 's_cbranch_scc1', 's_cbranch_vccz', 's_cbranch_vccnz',
                    's_cbranch_execz', 's_cbranch_execnz', 's_sleep', 's_setprio', 's_setpc_b64'):
            self.kind = 'branch' if op not in ('s_sleep', 's_setprio') else 'salu'
            self.fence = True
            if 'scc' in op: uses = [('scc', 0)]
            if 'vcc' in op: uses = [('vcc', 0)]
            if 'exec' in op: uses = [('exec', 0)]
        elif op.startswith('s_'):
            self.kind = 'salu'
            if op.startswith('s_cmp') or op.startswith('s_bitcmp'):
                defs = [('scc', 0)]; uses = allr(R)
            elif op.startswith('s_setreg'):
                uses = allr(R); self.fence = True
            else:
                defs = list(R[0]); uses = allr(R[1:])
                if 'saveexec' in op:
                    defs += [('exec', 0)]; uses += [('exec', 0)]
                if op in ('s_cselect_b32', 's_cselect_b64', 's_addc_u32', 's_subb_u32', 's_cmov_b32', 's_cmov_b64'):
                    uses += [('scc', 0)]
                if op in ('s_addk_i32', 's_mulk_i32', 's_cmov_b32', 's_cmov_b64', 's_bitset1_b32', 's_bitset0_b32'):
                    uses += R[0]
                if op not in ('s_mov_b32', 's_mov_b64', 's_movk_i32', 's_mul_i32', 's_mul_hi_u32', 's_cselect_b32', 's_cselect_b64',
                              's_getreg_b32', 's_getpc_b64', 's_mulk_i32', 's_brev_b32', 's_cmov_b32', 's_cmov_b64', 's_pack_ll_b32_b16'):
                    defs += [('scc', 0)]
        else:
            raise ValueError('unknown instruction: ' + text)
        self.defs = set(defs); self.uses = set(uses)

    def __repr__(self):
        return self.text


def mk(x, **kw):
    if isinstance(x, I):
        return [x]
    if isinstance(x, str):
        return [I(l, **kw) for l in x.split('\n') if l.strip() and not l.strip().startswith(';')]
    out = []
    for y in x:
        out += mk(y, **kw)
    return out


def is_valu(i):
    return i.kind in ('valu', 'trans')


def vregs(s):
    return {r for r in s if r[0] in 'va' and len(r[0]) == 1}


def sregs(s):
    return {r for r in s if r[0] == 's' or r[0] == 'vcc'}


def need_states(p, c):
    n = 0
    if p.kind == 'mfma':
        D = p.defs
        big = p.passes == 8
        if c.kind == 'mfma':
            if c.srcab & D: n = max(n, 12 if big else 8)
            if c.srcc & D:
                if not (c.srcc == D and c.passes == p.passes): n = max(n, 10 if big else 6)
            elif c.defs & D:
                n = max(n, 10 if big else 6)
        elif is_valu(c) or c.kind in ('ds', 'vmem'):
            if (c.uses | c.defs) & D: n = max(n, 12 if big else 8)
        if (is_valu(c)) and (c.defs & p.srcc): n = max(n, 7 if big else 3)
    if is_valu(p):
        vd = vregs(p.defs); sd = sregs(p.defs)
        if c.kind == 'mfma' and (c.uses & vd): n = max(n, 2)
        if c.kind == 'mfma' and ('exec', 0) in p.defs: n = max(n, 4)
        if is_valu(c):
            if c.op.startswith('v_permlane') and (c.uses & vd): n = max(n, 2)
            if ('dpp' in c.op or 'row_' in c.text or 'quad_perm' in c.text):
                if c.uses & vd: n = max(n, 2)
                if ('exec', 0) in p.defs: n = max(n, 5)
            if c.op.startswith('v_readlane') or c.op.startswith('v_readfirstlane'):
                if c.uses & vd: n = max(n, 1)
                if ('exec', 0) in p.defs: n = max(n, 4)
            if c.op.startswith('v_readlane') or c.op.startswith('v_writelane'):
                if c.uses & sd: n = max(n, 4)
            if c.op.startswith('v_permlane') and ('exec', 0) in p.defs: n = max(n, 4)
            if c.uses & sd: n = max(n, 2)
            if c.op.startswith('v_div_fmas') and ('vcc', 0) in p.defs: n = max(n, 4)
            if p.kind == 'trans' and (c.uses & vd): n = max(n, 1)
            if ('dst_sel' in p.text or re.search(r'op_sel:\[[01],[01],[01],1\]', p.text)) and ((c.uses | c.defs) & vd): n = max(n, 1)
        if p.kind == 'trans' and c.kind in ('ds', 'vmem') and (c.uses & vd): n = max(n, 1)
        if c.kind == 'vmem' and (c.uses & sd): n = max(n, 5)
        if c.kind in ('salu', 'smem', 'branch') and (c.uses & sd): n = max(n, 1)
    if p.kind == 'salu' and ('m0', 0) in p.defs and (c.lds_dma or 'addtid' in c.op): n = max(n, 1)
    if p.sdata and (c.defs & p.sdata): n = max(n, 2)
    return n


def states_of(i):
    if i.kind == 'nop':
        return int(i.text.split()[1], 0) + 1
    if i.kind == 'label':
        return 0
    return 1


def pad_hazards(insts, window=24):
    out = []
    for c in insts:
        need = 0; dist = 0
        for p in reversed(out[-window * 2:]):
            if dist >= 12: break
            n = need_states(p, c)
            if n - dist > need: need = n - dist
            dist += states_of(p)
        if need > 0:
            out.append(I(f's_nop {need - 1}'))
        out.append(c)
    return out


def parse_wait(t):
    vm = re.search(r'vmcnt\((\d+)\)', t); lg = re.search(r'lgkmcnt\((\d+)\)', t)
    return (int(vm.group(1)) if vm else None, int(lg.group(1)) if lg else None)


def insert_waits(insts):
    out = []
    vm = []
    lg = []
    for c in insts:
        if c.kind == 'wait':
            m = re.search(r'vmtag\((\w+)\)', c.text)
            v, l = parse_wait(c.text)
            if m:
                idx = [k for k, p in enumerate(vm) if p.tag == m.group(1)]
                v = (len(vm) - 1 - idx[-1]) if idx else None
                if v is not None and v > 63: v = 63
                parts = []
                if v is not None: parts.append(f'vmcnt({v})')
                if l is not None: parts.append(f'lgkmcnt({l})')
                if not parts: continue
                c = I('s_waitcnt ' + ' '.join(parts))
            if v is not None: vm = vm[len(vm) - v:] if v < len(vm) else vm
            if v == 0: vm = []
            if l is not None:
                if l == 0: lg = []
                elif not any(p.kind == 'smem' for p in lg): lg = lg[len(lg) - l:] if l < len(lg) else lg
            out.append(c); continue
        touch = c.uses | c.defs
        wv = wl = None
        for k in range(len(vm) - 1, -1, -1):
            if vm[k].defs & touch:
                wv = len(vm) - 1 - k; break
        for k in range(len(lg) - 1, -1, -1):
            if lg[k].defs & touch:
                wl = len(lg) - 1 - k
                if any(p.kind == 'smem' for p in lg): wl = 0
                break
        if wv is not None or wl is not None:
            parts = []
            if wv is not None:
                wv = min(wv, 63); parts.append(f'vmcnt({wv})'); vm = vm[len(vm) - wv:] if wv else []
            if wl is not None:
                wl = min(wl, 15); parts.append(f'lgkmcnt({wl})'); lg = lg[len(lg) - wl:] if wl else []
            out.append(I('s_waitcnt ' + ' '.join(parts)))
        if c.kind == 'vmem' and c.op not in ('buffer_inv',) and not c.nocount: vm.append(c)
        if c.kind in ('ds', 'smem'): lg.append(c)
        out.append(c)
    return out


def slots(i):
    if i.kind == 'trans': return 2
    if i.kind == 'mfma': return 2
    if i.kind == 'label': return 0
    return 1


def latency(p, c, raw):
    l = slots(p)
    h = need_states(p, c)
    if h: l = max(l, h + 1)
    if raw:
        if p.lat is not None: l = max(l, p.lat)
        elif p.kind == 'ds': l = max(l, 28)
        elif p.kind == 'vmem': l = max(l, 200)
        elif p.kind == 'smem': l = max(l, 60)
        elif p.kind == 'mfma':
            if c.kind == 'mfma' and c.srcc == p.defs and not (c.srcab & p.defs): l = max(l, p.passes)
            else: l = max(l, p.passes + 6)
        elif p.kind == 'trans': l = max(l, 3)
        elif p.kind == 'valu': l = max(l, 1)
    return l


def schedule(insts, ds_gap=1, vm_gap=1, keep_mfma_order=False):
    out, blk = [], []
    for i in insts:
        if i.fence:
            out += _sched(blk, ds_gap, vm_gap, keep_mfma_order); blk = []; out.append(i)
        else:
            blk.append(i)
    out += _sched(blk, ds_gap, vm_gap, keep_mfma_order)
    return out


def _sched(b, ds_gap, vm_gap, keep_mfma_order):
    n = len(b)
    if n <= 1: return list(b)
    succ = [[] for _ in range(n)]; npred = [0] * n
    lastw = {}; readers = {}
    lastvm = None; lastmf = None
    for j, c in enumerate(b):
        e = {}
        us = set(c.uses) | {('mem', t) for t in c.mr}
        ds = set(c.defs) | {('mem', t) for t in c.mw}
        for r in us:
            if r in lastw:
                k = lastw[r]
                e[k] = max(e.get(k, 0), latency(b[k], c, r[0] != 'mem'))
        for r in ds:
            if r in lastw:
                k = lastw[r]
                e[k] = max(e.get(k, 0), latency(b[k], c, b[k].kind in ('ds', 'vmem', 'smem') and r[0] != 'mem'))
            for k in readers.get(r, ()):
                if k != j: e[k] = max(e.get(k, 0), latency(b[k], c, False))
        if c.kind == 'vmem':
            if lastvm is not None: e[lastvm] = max(e.get(lastvm, 0), 1)
            lastvm = j
        if keep_mfma_order and c.kind == 'mfma':
            if lastmf is not None: e[lastmf] = max(e.get(lastmf, 0), 1)
            lastmf = j
        for r in us: readers.setdefault(r, []).append(j)
        for r in ds:
            lastw[r] = j; readers[r] = []
        for k, l in e.items():
            succ[k].append((j, l)); npred[j] += 1
    cp = [0] * n
    for j in range(n - 1, -1, -1):
        cp[j] = max([l + cp[s] for s, l in succ[j]], default=slots(b[j])) + b[j].prio
    ready_t = [0] * n
    ready = [j for j in range(n) if npred[j] == 0]
    t = 0; mf_free = 0; ds_free = 0; vm_free = 0
    order = []
    while ready:
        def est(j):
            e = ready_t[j]
            if b[j].kind == 'mfma': e = max(e, mf_free)
            if b[j].kind == 'ds': e = max(e, ds_free)
            if b[j].kind == 'vmem': e = max(e, vm_free)
            return e
        av = [j for j in ready if est(j) <= t]
        if not av:
            t = min(est(j) for j in ready); continue
        mf = [j for j in av if b[j].kind == 'mfma']
        pick = max(mf if mf else av, key=lambda j: (cp[j], -j))
        ready.remove(pick); order.append(pick)
        i = b[pick]
        if i.kind == 'mfma': mf_free = t + i.passes
        if i.kind == 'ds': ds_free = t + ds_gap
        if i.kind == 'vmem': vm_free = t + vm_gap
        for s, l in succ[pick]:
            ready_t[s] = max(ready_t[s], t + l); npred[s] -= 1
            if npred[s] == 0: ready.append(s)
        t += slots(i)
    assert len(order) == n
    _sched.last_len = t
    return [b[j] for j in order]


_CACHE = os.path.join(os.path.dirname(os.path.abspath(__file__)), '.sizes.pkl')
_sizes = pickle.load(open(_CACHE, 'rb')) if os.path.exists(_CACHE) else {}


def _norm(t):
    return t.split(';')[0].strip()


def compute_sizes(insts):
    todo = []
    for i in insts:
        if i.size is not None: continue
        if i.kind == 'branch' or i.kind in ('wait', 'nop', 'barrier'):
            i.size = 4; continue
        if i.kind in ('mfma', 'ds', 'vmem', 'smem'):
            i.size = 8; continue
        t = _norm(i.text)
        if re.search(r'(?<![\w])L_\w+', t):
            i.size = 8; continue
        if t not in _sizes: todo.append(t)
    todo = list(dict.fromkeys(todo))
    if todo:
        r = subprocess.run(['llvm-mc', '-triple=amdgcn-amd-amdhsa', '-mcpu=gfx950', '-show-encoding'],
                           input='\n'.join(todo) + '\n', capture_output=True, text=True)
        if r.returncode != 0:
            raise SystemExit(r.stderr[:3000])
        enc = re.findall(r'encoding: \[([^\]]*)\]', r.stdout)
        assert len(enc) == len(todo), (len(enc), len(todo))
        for t, e in zip(todo, enc): _sizes[t] = len(e.split(','))
        pickle.dump(_sizes, open(_CACHE, 'wb'))
    for i in insts:
        if i.size is None: i.size = _sizes[_norm(i.text)]


_NOPROMO = ('v_readfirstlane_b32', 'v_accvgpr_mov_b32', 'v_nop', 'v_dot2c_f32_bf16', 'v_swap_b32', 'v_fmamk_f32', 'v_fmaak_f32')


def promotable(i):
    return is_valu(i) and i.size == 4 and i.op not in _NOPROMO and not i.op.endswith('_e32')


def align_stream(insts, use_nops=False):
    compute_sizes(insts)
    pos = 0; last4 = None; out = []; bad = 0
    for i in insts:
        if i.kind == 'label' and i.text.startswith('.p2align'):
            a = 1 << int(i.text.split()[1].rstrip(','))
            pos = (pos + a - 1) // a * a; last4 = None; out.append(i); continue
        if i.size == 8 and pos % 8 == 4:
            if last4 is not None:
                p = out[last4]
                sp = p.text.split(None, 1)
                q = I(sp[0] + '_e64 ' + sp[1], mr=p.mr, mw=p.mw, tag=p.tag); q.size = 8
                out[last4] = q; pos += 4
            elif use_nops and pos % 32 == 28:
                q = I('s_nop 0'); q.size = 4; out.append(q); pos += 4
            elif pos % 32 == 28:
                bad += 1
        if i.size == 8: last4 = None
        elif i.size == 4 and promotable(i) and pos % 8 == 0: last4 = len(out)
        out.append(i); pos += i.size
    align_stream.bad = bad; align_stream.bytes = pos
    return out


def finalize(insts, align=True):
    x = insert_waits(mk(insts))
    x = pad_hazards(x)
    if align: x = align_stream(x)
    return x


def text_of(insts):
    return '\n'.join((i.text if i.kind == 'label' else '  ' + i.text) for i in insts) + '\n'


class Regs:
    def __init__(self, kind, lo, hi):
        self.kind = kind; self.free = set(range(lo, hi)); self.hi = lo; self.named = {}

    def alloc(self, n=1, align=None, name=None):
        if align is None: align = 1 if n == 1 else (2 if self.kind != 's' else min(n, 4))
        for b in sorted(self.free):
            if b % align == 0 and all(b + k in self.free for k in range(n)):
                for k in range(n): self.free.discard(b + k)
                self.hi = max(self.hi, b + n)
                return Rg(self.kind, b, n)
        raise RuntimeError(f'out of {self.kind} registers (n={n})')

    def release(self, *rs):
        for r in rs:
            if isinstance(r, (list, tuple)):
                self.release(*r); continue
            for k in range(r.n):
                assert r.b + k not in self.free, r
                self.free.add(r.b + k)


class Rg:
    __slots__ = ('k', 'b', 'n')

    def __init__(self, k, b, n=1):
        self.k = k; self.b = b; self.n = n

    def __getitem__(self, i):
        if isinstance(i, slice):
            s = i.start or 0; e = self.n if i.stop is None else i.stop
            assert 0 <= s < e <= self.n, (self, i)
            return Rg(self.k, self.b + s, e - s)
        assert 0 <= i < self.n, (str(self), i)
        return Rg(self.k, self.b + i, 1)

    def __str__(self):
        return f'{self.k}{self.b}' if self.n == 1 else f'{self.k}[{self.b}:{self.b + self.n - 1}]'
    __repr__ = __str__

    def __format__(self, spec):
        return str(self)
```

```python
import sys, struct, math
from asmlib import *

KNAME = "concat_heads__linear_kernel_hedgehog__ssm_conv_s4d__prompt_kernel"
MF = "v_mfma_f32_16x16x32_bf16"
LOG2E = 0x3fb8aa3b
WS_UT = 0
WS_O = 4 << 20
WS_P1 = 8 << 20
WS_P1Z = 10 << 20
WS_P2 = WS_P1Z + (1 << 16)
WS_P2Z = WS_P2 + (1 << 17)
WS_FL = WS_P2Z + (1 << 13)
WS_STAMP = 12 << 20
WS_DUMP = 16 << 20
WS_SIZE = 0x10000000
SLOT = 32768
L_SCR = 3 * SLOT
SCR_W = 8704
L_UP = 4 * SLOT
UT_W = 4672
L_UTILE = L_SCR + 4 * SCR_W
L_KA = L_UP + 4 * UT_W
KA_W = 3200
KA_A, KA_B, KA_G2A, KA_G2B, KA_G3 = 0, 1196, 2336, 2592, 2848
assert L_UTILE + 16384 <= L_KA and L_KA + 4 * KA_W <= 163840
LDS_BYTES = 163840


def f32(x):
    return struct.unpack('<I', struct.pack('<f', x))[0]


def mask_table():
    out = []
    types = [(16, 4, 1), (16, 8, 2), (16, 12, 1), (24, 16, 2), (16, 8, 3), (24, 16, 4)]
    for (off, pw, hw) in types:
        for l in range(64):
            j, g = l & 15, l >> 4
            v = [0x3F80 if abs((8 * g + e - off) - (j - pw)) <= hw else 0 for e in range(8)]
            out += [v[2 * p] | v[2 * p + 1] << 16 for p in range(4)]
    for l in range(64):
        j, g = l & 15, l >> 4
        v = [0xFFFF if (j - (8 * g + e) + 16 + 1024) in (1027, 1028) else 0 for e in range(8)]
        out += [v[2 * p] | v[2 * p + 1] << 16 for p in range(4)]
    return out


class G:
    def __init__(self, **o):
        self.o = dict(ra=1, rc=1, win=2, stamps=0, dump=None, stop=None, sched=1, a1_at=6, codepf=1)
        self.o.update(o)
        self.c = []
        self.tailc = []
        self.V = Regs('v', 1, 256)
        self.S = Regs('s', 3, 100)
        self.nstamp = 0
        self.ndump = 0

    def A(self, x, **k):
        self.c.extend(mk(x, **k))

    def blk(self, fn, **kw):
        save = self.c; self.c = []
        fn()
        b = self.c; self.c = save
        return schedule(b, **kw) if self.o['sched'] else b

    def stamp(self):
        if self.o['stamps']:
            k = self.nstamp; self.nstamp += 1
            self.A(f"s_memrealtime {self.sst[2*k:2*k+2]}", fence=True)
            self.A("s_waitcnt lgkmcnt(0)")

    def dump(self, regs):
        t = self.V.alloc()
        self.A(f"v_lshlrev_b32 {t}, 4, v0")
        for r in regs:
            self.A(f"s_lshl_b32 {self.st0}, s2, 18\ns_add_u32 {self.st0}, {self.st0}, {WS_DUMP + self.ndump * 4096}")
            self.A(f"buffer_store_dwordx4 {r}, {t}, {self.rws}, {self.st0} offen")
            self.ndump += 1
        self.A("s_waitcnt vmcnt(0)")
        self.V.release(t)

    def prologue(self):
        A, V, S, o = self.A, self.V, self.S, self.o
        self.rx, self.rw, self.rwo, self.ru, self.rout, self.rws = [S.alloc(4, 4) for _ in range(6)]
        self.pp = S.alloc(12, 4)
        self.pphi = S.alloc(2, 2); self.pdbg = S.alloc(2, 2); self.ptab = S.alloc(2, 2)
        self.sL = S.alloc(2, 2)
        self.srb, self.shp, self.sw, self.srot, self.st0, self.st1, self.st2 = [S.alloc() for _ in range(7)]
        self.skx, self.skw, self.swl, self.swk, self.srb2, self.scb2, self.sspin = [S.alloc() for _ in range(7)]
        if o['stamps']: self.sst = S.alloc(28, 2)
        st0, st1, st2 = self.st0, self.st1, self.st2
        A("s_cmp_ge_u32 s2, 256\ns_cbranch_scc1 L_end")
        A(f"s_load_dwordx2 {self.rx[0:2]}, s[0:1], 0\ns_load_dwordx2 {self.rw[0:2]}, s[0:1], 8")
        A(f"s_load_dwordx4 {self.pp[0:4]}, s[0:1], 40\ns_load_dwordx4 {self.pp[4:8]}, s[0:1], 56\ns_load_dwordx4 {self.pp[8:12]}, s[0:1], 72")
        A(f"s_load_dwordx2 {self.ru[0:2]}, s[0:1], 32\ns_load_dwordx2 {self.rws[0:2]}, s[0:1], 104")
        A(f"s_load_dwordx2 {self.pphi}, s[0:1], 16\ns_load_dwordx2 {self.rwo[0:2]}, s[0:1], 24")
        A(f"s_load_dwordx2 {self.rout[0:2]}, s[0:1], 88\ns_load_dwordx2 {self.pdbg}, s[0:1], 96")
        if o['stamps']:
            A(f"s_memrealtime {self.sst[0:2]}", fence=True); self.nstamp = 1
        self.lane = lane = V.alloc()
        t0, t1, t2, t3 = self.t = [V.alloc() for _ in range(4)]
        A(f"v_lshrrev_b32 {t0}, 6, v0\nv_and_b32 {lane}, 63, v0\nv_readfirstlane_b32 {self.sw}, {t0}")
        A(f"s_bfe_u32 {st0}, s2, 0x30003\ns_lshr_b32 {st1}, s2, 6")
        A(f"s_and_b32 {self.srb}, s2, 1\ns_lshl_b32 {self.srb}, {self.srb}, 3\ns_add_u32 {self.srb}, {self.srb}, {st0}")
        A(f"s_and_b32 {self.shp}, s2, 6\ns_lshl_b32 {self.shp}, {self.shp}, 1\ns_add_u32 {self.shp}, {self.shp}, {st1}")
        A(f"s_mul_i32 {self.srot}, {st0}, {o['ra']}\ns_mul_i32 {st1}, {st1}, {o['rc']}\ns_add_u32 {self.srot}, {self.srot}, {st1}")
        A(f"s_and_b32 {self.srb2}, s2, 7\ns_lshl_b32 {self.srb2}, {self.srb2}, 1\ns_bfe_u32 {st1}, s2, 0x10003\ns_add_u32 {self.srb2}, {self.srb2}, {st1}\ns_lshr_b32 {self.scb2}, s2, 4")
        self.vx = vx = V.alloc(4, 1); self.vw = vw = V.alloc(4, 1)
        A(f"v_lshrrev_b32 {t0}, 3, {lane}\nv_lshrrev_b32 {t1}, 4, {lane}\nv_and_b32 {t2}, 7, {lane}\nv_xor_b32 {t3}, {t1}, {t2}")
        A(f"v_lshlrev_b32 {t3}, 4, {t3}\nv_lshl_add_u32 {vx[0]}, {t0}, 11, {t3}\nv_xor_b32 {vx[1]}, 64, {vx[0]}")
        A(f"v_add_u32 {vx[1]}, {15360}, {vx[1]}\nv_add_u32 {vx[2]}, {2*15360}, {vx[0]}\nv_add_u32 {vx[3]}, {2*15360}, {vx[1]}")
        A(f"v_and_b32 {t1}, 1, {t1}\nv_lshlrev_b32 {t1}, 1, {t1}\nv_xor_b32 {t3}, {t1}, {t2}\nv_lshlrev_b32 {t3}, 4, {t3}")
        A(f"v_mul_u32_u24 {t1}, 6144, {t0}\nv_add_u32 {vw[0]}, {t1}, {t3}\nv_xor_b32 {vw[1]}, 64, {vw[0]}")
        d = 8 * 6144 - 1024
        A(f"v_add_u32 {vw[1]}, {d}, {vw[1]}\nv_add_u32 {vw[2]}, {2*d}, {vw[0]}\nv_add_u32 {vw[3]}, {2*d}, {vw[1]}")
        self.vu = vu = V.alloc(2, 1)
        A(f"v_lshl_add_u32 {vu[0]}, {t0}, 11, {t3}\nv_xor_b32 {vu[1]}, 64, {vu[0]}\nv_add_u32 {vu[1]}, 15360, {vu[1]}")
        A(f"s_lshl_b32 {st0}, {self.srb}, 2\ns_add_u32 {st0}, {st0}, {self.sw}\ns_lshl_b32 {self.skx}, {st0}, 16")
        A(f"s_lshr_b32 {st0}, {self.sw}, 1\ns_add_u32 {st0}, {st0}, 1\ns_lshl_b32 {st0}, {st0}, 11\ns_lshl_b32 {st1}, {self.shp}, 7\ns_add_u32 {st0}, {st0}, {st1}")
        A(f"s_and_b32 {st1}, {self.sw}, 1\ns_mul_i32 {st1}, {st1}, {32*6144}\ns_add_u32 {self.swk}, {st0}, {st1}\ns_lshl_b32 {self.swl}, {self.sw}, 12")
        for r, n in ((self.rx, 4 << 20), (self.rw, 6 << 20), (self.rwo, 2 << 20), (self.ru, 4 << 20), (self.rout, 8 << 20), (self.rws, WS_SIZE)):
            A(f"s_mov_b32 {r[2]}, {n}\ns_mov_b32 {r[3]}, 0x20000")
        A(f"s_mov_b32 {self.sL[0]}, {LOG2E}\ns_mov_b32 {self.sL[1]}, {LOG2E}")
        A(f"s_getpc_b64 {self.ptab}\nL_pc:")
        A("s_waitcnt lgkmcnt(0)")
        self.prm = prm = V.alloc(6, 1)
        A(f"s_lshl_b32 {st0}, {self.shp}, 4\ns_add_u32 {st0}, {st0}, {self.srb}\ns_lshl_b32 {st0}, {st0}, 2\ns_add_u32 {st0}, {st0}, {self.sw}")
        A(f"s_lshl_b32 {st1}, {st0}, 8\nv_lshl_add_u32 {t0}, {lane}, 2, {st1}\ns_lshl_b32 {st1}, {st0}, 1\nv_mov_b32 {t1}, {st1}")
        A(f"global_load_ushort {prm[4]}, {t1}, {self.pp[8:10]}")
        for k in range(4): A(f"global_load_dword {prm[k]}, {t0}, {self.pp[2*k:2*k+2]}")
        A(f"global_load_ushort {prm[5]}, {t1}, {self.pp[10:12]}")
        if o['codepf']:
            A(f"s_lshr_b32 {st0}, s2, 3\ns_lshl_b32 {st0}, {st0}, 2\ns_add_u32 {st0}, {st0}, {self.sw}\ns_mul_i32 {st0}, {st0}, 512")
            A(f"v_bfe_u32 {t2}, {lane}, 0, 2\nv_lshl_add_u32 {t2}, {t2}, 7, {st0}\nv_min_u32 {t2}, L_codeend-L_pc-4, {t2}")
            A(f"global_load_dword {t3}, {t2}, {self.ptab}")
        A(self.issue_kv(0))
        A(f"s_lshl_b32 {st0}, {self.shp}, 7\ns_add_u32 {st0}, {st0}, {self.skx}\ns_add_u32 m0, {self.swl}, {L_UTILE}\ns_add_u32 {st1}, {st0}, {2*15360}")
        for i in range(4):
            A(f"buffer_load_dwordx4 {vu[i&1]}, {self.ru}, {st0 if i < 2 else st1} offen offset:{1024*i} lds", tag="ut")
        A(self.issue_kv(1)); A(self.issue_kv(2))
        A(f"s_add_u32 {self.ptab[0]}, {self.ptab[0]}, L_tab-L_pc\ns_addc_u32 {self.ptab[1]}, {self.ptab[1]}, 0")
        V.release(vu)

    def kb(self, s, dst):
        w = self.o['win']
        x = mk(f"s_add_u32 {dst}, {self.srot}, {s & (w-1)}\ns_and_b32 {dst}, {dst}, {w-1}")
        if s & ~(w - 1): x += mk(f"s_or_b32 {dst}, {dst}, {s & ~(w-1)}")
        return x

    def issue_kv(self, s):
        slot = (s % 3) * SLOT; st2 = self.st2; k = self.skw
        x = self.kb(s, st2)
        x += mk(f"s_lshl_b32 {k}, {st2}, 7\ns_add_u32 {k}, {k}, {self.skx}\ns_add_u32 m0, {self.swl}, {slot}")
        for i in range(4): x += mk(f"buffer_load_dwordx4 {self.vx[i]}, {self.rx}, {k} offen offset:{1024*i} lds", tag=f"st{s}")
        x += mk(f"s_mul_i32 {k}, {st2}, {64*6144}\ns_add_u32 {k}, {k}, {self.swk}\ns_add_u32 m0, {self.swl}, {slot + 16384}")
        for i in range(4): x += mk(f"buffer_load_dwordx4 {self.vw[i]}, {self.rw}, {k} offen offset:{1024*i} lds", tag=f"st{s}")
        return x

    QSLOT = [3, 1, 2, 0]

    def issue_q(self, j):
        st2, k, w = self.st2, self.skw, self.o['win']
        x = mk(f"s_add_u32 {k}, {self.sw}, {4*j}\ns_add_u32 {st2}, {self.srot}, {k}\ns_and_b32 {st2}, {st2}, {w-1}\ns_andn2_b32 {k}, {k}, {w-1}\ns_or_b32 {st2}, {st2}, {k}")
        x += mk(f"s_mul_i32 {k}, {st2}, {64*6144}\ns_lshl_b32 {st2}, {self.shp}, 7\ns_add_u32 {k}, {k}, {st2}")
        x += mk(f"s_lshl_b32 {st2}, {self.swl}, 1\ns_add_u32 m0, {st2}, {self.QSLOT[j]*SLOT}")
        for i in range(4): x += mk(f"buffer_load_dwordx4 {self.vw[i]}, {self.rw}, {k} offen offset:{1024*i} lds", tag=f"q{j}")
        x += mk(f"s_add_u32 {k}, {k}, {32*6144}\ns_add_u32 m0, m0, 4096")
        for i in range(4): x += mk(f"buffer_load_dwordx4 {self.vw[i]}, {self.rw}, {k} offen offset:{1024*i} lds", tag=f"q{j}")
        return x

    def issue_wo(self, slot):
        st2, k = self.st2, self.skw
        x = mk(f"s_lshl_b32 {k}, {self.sw}, 17\ns_lshl_b32 {st2}, {self.scb2}, 7\ns_add_u32 {k}, {k}, {st2}\ns_add_u32 {k}, {k}, {slot*256*2048}")
        x += mk(f"s_lshl_b32 {st2}, {self.swl}, 1\ns_add_u32 m0, {st2}, {slot*SLOT}")
        for i in range(4): x += mk(f"buffer_load_dwordx4 {self.vo[i]}, {self.rwo}, {k} offen offset:{1024*i} lds", tag="wo")
        x += mk(f"s_add_u32 {k}, {k}, {32*2048}\ns_add_u32 m0, m0, 4096")
        for i in range(4): x += mk(f"buffer_load_dwordx4 {self.vo[i]}, {self.rwo}, {k} offen offset:{1024*i} lds", tag="wo")
        return x

    def clears(self):
        A, V = self.A, self.V
        st0, st1 = self.st0, self.st1; lane = self.lane
        ones = V.alloc(4, 2); a = V.alloc(); b = V.alloc()
        for k in range(4): A(f"v_mov_b32 {ones[k]}, -1")
        A(f"s_lshl_b32 {st0}, {self.shp}, 4\ns_add_u32 {st0}, {st0}, {self.srb}")
        A(f"s_lshl_b32 {st1}, {st0}, 13\ns_add_u32 {st1}, {st1}, {WS_P1}\nv_lshlrev_b32 {a}, 4, v0")
        A(f"buffer_store_dwordx4 {ones}, {a}, {self.rws}, {st1} offen sc1", tag="clr")
        A(f"s_add_u32 {st1}, {st1}, 4096")
        A(f"buffer_store_dwordx4 {ones}, {a}, {self.rws}, {st1} offen sc1", tag="clr")
        A(f"s_lshl_b32 {st1}, {st0}, 9\ns_add_u32 {st1}, {st1}, {WS_P2}\nv_lshl_add_u32 {a}, {lane}, 2, {st1}\ns_lshl_b32 {st1}, {self.sw}, 7\nv_add_u32 {a}, {st1}, {a}")
        A(f"s_lshl_b32 {st1}, {st0}, 2\ns_add_u32 {st1}, {st1}, {self.sw}\ns_lshl_b32 {st1}, {st1}, 6\ns_add_u32 {st1}, {st1}, {WS_P1Z - 128}\nv_lshl_add_u32 {b}, {lane}, 2, {st1}")
        A(f"v_cmp_gt_u32 vcc, 32, {lane}\nv_cndmask_b32 {a}, {b}, {a}, vcc")
        A(self.p2z_addr(st1))
        A(f"s_lshl_b32 {st0}, {self.sw}, 2\ns_add_u32 {st1}, {st1}, {st0}\nv_mov_b32 {b}, {st1}\nv_cmp_gt_u32 vcc, 48, {lane}\nv_cndmask_b32 {a}, {b}, {a}, vcc")
        A(self.flag_addr(st1))
        A(f"v_mov_b32 {b}, {st1}\nv_cmp_gt_u32 vcc, 49, {lane}\nv_cndmask_b32 {a}, {b}, {a}, vcc")
        A(f"buffer_store_dword {ones[0]}, {a}, {self.rws}, 0 offen sc1", tag="clr")
        V.release(ones, a, b)

    def p2z_addr(self, d):
        s2 = self.st2
        return mk(f"s_lshl_b32 {d}, {self.shp}, 2\ns_lshr_b32 {s2}, {self.srb}, 2\ns_add_u32 {d}, {d}, {s2}\ns_lshl_b32 {d}, {d}, 3\n"
                  f"s_and_b32 {s2}, {self.srb}, 3\ns_add_u32 {d}, {d}, {s2}\ns_lshl_b32 {d}, {d}, 4\ns_add_u32 {d}, {d}, {WS_P2Z}")

    def flag_addr(self, d):
        return mk(f"s_lshl_b32 {d}, {self.srb}, 2\ns_add_u32 {d}, {d}, {self.sw}\ns_lshl_b32 {d}, {d}, 4\ns_add_u32 {d}, {d}, {self.shp}\n"
                  f"s_lshl_b32 {d}, {d}, 2\ns_add_u32 {d}, {d}, {WS_FL}")

    def tr_addr(self, dst, mode):
        t0, t1, t2, _ = self.t; lane = self.lane
        x = f"v_lshrrev_b32 {t0}, 4, {lane}\nv_bfe_u32 {t1}, {lane}, 2, 2\nv_lshl_add_u32 {t2}, {t0}, {3 if mode == 'w' else 2}, {t1}\nv_lshlrev_b32 {t2}, 7, {t2}\n"
        x += f"v_bfe_u32 {t0}, {lane}, 3, 2\nv_lshl_add_u32 {t2}, {t0}, 5, {t2}\nv_and_b32 {t0}, 3, {lane}\nv_lshl_add_u32 {dst}, {t0}, 3, {t2}"
        return mk(x)

    def utrans(self):
        A, V = self.A, self.V
        st0 = self.st0; lane = self.lane
        a = V.alloc(); b = V.alloc(); ad = V.alloc(); d = [V.alloc(4, 2) for _ in range(4)]
        A(self.tr_addr(a, 'w'))
        A(f"s_add_u32 {st0}, {self.swl}, {L_UTILE}\nv_add_u32 {a}, {st0}, {a}")
        A(f"v_and_b32 {ad}, 15, {lane}\nv_lshlrev_b32 {ad}, 12, {ad}\nv_lshrrev_b32 {b}, 4, {lane}\nv_lshl_add_u32 {ad}, {b}, 4, {ad}")
        A(f"s_lshl_b32 {st0}, {self.shp}, 18\ns_lshr_b32 {self.st1}, {self.skx}, 10\ns_add_u32 {st0}, {st0}, {self.st1}")
        A("s_waitcnt vmtag(ut)")
        for ct in range(4):
            A(f"v_xor_b32 {b}, {32*ct}, {a}")
            for h in range(2): A(f"ds_read_b64_tr_b16 {d[ct][2*h:2*h+2]}, {b} offset:{512*h}")
        for ct in range(4):
            A(f"buffer_store_dwordx4 {d[ct]}, {ad}, {self.rws}, {st0} offen sc1", tag="clr")
            if ct < 3: A(f"s_add_u32 {st0}, {st0}, {16*4096}")
        V.release(a, b, ad, d)

    def cmul(self, d, a, b):
        self.A(f"v_pk_mul_f32 {d}, {a}, {b} op_sel:[0,0] op_sel_hi:[0,1]")
        self.A(f"v_pk_fma_f32 {d}, {a}, {b}, {d} op_sel:[1,1,0] op_sel_hi:[1,0,1] neg_lo:[1,0,0]")

    def exp_bf16(self, d, x, t):
        A = self.A
        lo = f32(math.log2(math.e) - struct.unpack('<f', struct.pack('<I', LOG2E))[0])
        A(f"v_mul_f32 {t[0]}, {self.sL[0]}, {x}\nv_fma_f32 {t[1]}, {x}, {self.sL[0]}, -{t[0]}\nv_fmamk_f32 {t[1]}, {x}, {hex(lo)}, {t[1]}")
        A(f"v_exp_f32 {t[0]}, {t[0]}\nv_mul_f32 {t[1]}, 0x3f317218, {t[1]}\nv_fma_f32 {t[0]}, {t[0]}, {t[1]}, {t[0]}")
        A(f"v_cvt_pk_bf16_f32 {d}, {t[0]}, {t[0]}\nv_and_b32 {d}, 0xffff0000, {d}")

    def kgen(self):
        A, V = self.A, self.V
        lane, prm, st0 = self.lane, self.prm, self.st0
        mark = set(V.free)
        wa = V.alloc(); ra = V.alloc(); ka = V.alloc()
        z4 = V.alloc(4, 2)
        A(f"s_mul_i32 {st0}, {self.sw}, {SCR_W}\ns_add_u32 {st0}, {st0}, {L_SCR}\nv_lshl_add_u32 {wa}, {lane}, 3, {st0}")
        jc = V.alloc(); g = V.alloc()
        A(f"v_and_b32 {jc}, 15, {lane}\nv_lshrrev_b32 {g}, 4, {lane}\nv_mul_u32_u24 {ra}, 544, {jc}\nv_lshl_add_u32 {ra}, {g}, 4, {ra}\nv_add_u32 {ra}, {st0}, {ra}")
        self.ska = ska = self.S.alloc()
        A(f"s_mul_i32 {ska}, {self.sw}, {KA_W}\ns_add_u32 {ska}, {ska}, {L_KA}\nv_lshl_add_u32 {ka}, {lane}, 4, {ska}")
        for k in range(4): A(f"v_mov_b32 {z4[k]}, 0")
        for off in (0, 1024, 2048, KA_W - 1024): A(f"ds_write_b128 {ka}, {z4} offset:{off}", mw=['ka'])
        dt = V.alloc(); dsk = V.alloc(); tt = V.alloc(2, 1)
        A(f"v_lshlrev_b32 {dt}, 16, {prm[4]}\nv_lshlrev_b32 {dsk}, 16, {prm[5]}")
        self.exp_bf16(dt, dt, tt)
        E = {}
        C = []
        for m in range(2):
            ex = (lambda d, s: f"v_lshlrev_b32 {d}, 16, {s}") if m == 0 else (lambda d, s: f"v_and_b32 {d}, 0xffff0000, {s}")
            rho = V.alloc(); phi = V.alloc(); t2 = V.alloc(2, 1); c = V.alloc(2, 2)
            A(ex(rho, prm[0])); self.exp_bf16(rho, rho, t2)
            A(f"v_mul_f32 {rho}, {rho}, {dt}\nv_mul_f32 {rho}, {hex(LOG2E | 0x80000000)}, {rho}")
            A(ex(phi, prm[1])); A(f"v_mul_f32 {phi}, {phi}, {dt}\nv_mul_f32 {phi}, 0.15915494, {phi}")
            A(ex(c[0], prm[2])); A(ex(c[1], prm[3]))
            A(f"v_mul_f32_e64 {c[0]}, {c[0]}, {dt}\nv_mul_f32_e64 {c[1]}, {c[1]}, {dt}\nv_pk_add_f32 {c}, {c}, {c}")
            C.append(c)
            for p in (1, 8, 128):
                e = V.alloc(2, 2); mg = V.alloc(); th = V.alloc()
                if p == 1: A(f"v_exp_f32 {mg}, {rho}\nv_fract_f32 {th}, {phi}")
                else: A(f"v_mul_f32 {mg}, {hex(f32(p))}, {rho}\nv_exp_f32 {mg}, {mg}\nv_mul_f32 {th}, {hex(f32(p))}, {phi}\nv_fract_f32 {th}, {th}")
                A(f"v_cos_f32 {e[0]}, {th}\nv_sin_f32 {e[1]}, {th}\nv_mul_f32 {e[0]}, {e[0]}, {mg}\nv_mul_f32 {e[1]}, {e[1]}, {mg}")
                E[(m, p)] = e
        pk = [V.alloc(2, 2) for _ in range(4)]; npk = [0]

        def put(row, vals, neg=False):
            d = pk[npk[0] % len(pk)]; npk[0] += 1
            for m in range(2):
                if vals is None: A(f"v_mov_b32 {d[m]}, 0x3f80")
                else: A(f"v_cvt_pk_bf16_f32 {d[m]}, {vals[m][0]}, {'-' if neg else ''}{vals[m][1]}")
            A(f"ds_write_b64 {wa}, {d} offset:{row*544}", mw=[f'scr{row}'])

        def mul(p, q, r, keep=True):
            for m in range(2):
                d = V.alloc(2, 2); self.cmul(d, E[(m, q)], E[(m, r)]); E[(m, p)] = d

        def drop(*ps):
            for p in ps:
                for m in range(2): V.release(E.pop((m, p)))

        def frags(dst):
            for ks in range(8): A(f"ds_read_b128 {dst[ks]}, {ra} offset:{64*ks}", mr=[f'scr{r}' for r in range(16)])
        O = [Rg('a', 4 * k, 4) for k in range(8)]
        B = [[Rg('a', 32 + 32 * b + 4 * k, 4) for k in range(8)] for b in range(3)]
        mul(16, 8, 8)
        cur = [C, [V.alloc(2, 2) for m in range(2)]]
        nxt = [[V.alloc(2, 2) for m in range(2)] for _ in range(2)]
        for m in range(2): self.cmul(cur[1][m], C[m], E[(m, 8)])
        for j in range(16):
            ch = j & 1
            put(j, cur[ch], neg=True)
            if j + 2 < 16:
                for m in range(2): self.cmul(nxt[ch][m], cur[ch][m], E[(m, 16)])
                cur[ch], nxt[ch] = nxt[ch], cur[ch]
        frags(O)
        V.release(cur, nxt); drop(16)
        g2 = lambda p: [E[(0, p)], E[(1, p)]]
        mul(2, 1, 1); mul(3, 2, 1); mul(4, 2, 2); mul(5, 4, 1); mul(6, 4, 2); mul(7, 4, 3)
        put(0, None)
        for r in range(1, 8): put(r, g2(r))
        put(8, g2(128))
        for r in range(1, 8):
            mul(128 + r, 128, r); put(8 + r, g2(128 + r))
            if r > 1: drop(128 + r - 1)
        frags(B[0]); drop(135, 1, 3, 5, 7)
        mul(256, 128, 128); mul(384, 256, 128); mul(512, 256, 256)
        for b, base in enumerate((256, 384)):
            put(4 * b, g2(base))
            for r in range(1, 4):
                mul(base + 2 * r, base, 2 * r); put(4 * b + r, g2(base + 2 * r))
            drop(base + 2, base + 4, base + 6)
        mul(516, 512, 4); mul(520, 512, 8)
        for cc in range(4):
            for h in range(2):
                p = 516 + 4 * h + 128 * cc
                put(8 + 2 * cc + h, g2(p))
                if cc < 3: mul(p + 128, p, 128)
                drop(p)
        frags(B[1]); drop(384, 2, 4, 6)
        mul(1024, 512, 512); mul(1032, 1024, 8); mul(1160, 1032, 128)
        put(8, g2(512))
        for cc in range(8):
            p = 1032 + 128 * cc
            put(cc, g2(p))
            if cc < 6: mul(p + 256, p, 256)
            drop(p)
        frags(B[2])
        F = [V.alloc(4, 4) for _ in range(3)]
        for b in range(3):
            for ks in range(8): A(f"{MF} {F[b]}, {B[b][ks]}, {O[ks]}, {F[b] if ks else 0}")
        X, Y, Z = F
        d = V.alloc(4, 4); e = V.alloc(4, 2); a1 = V.alloc(); a2 = V.alloc(); a3 = V.alloc(); a4 = V.alloc(); tm = V.alloc()
        cv = lambda dd, x, y: A(f"v_cvt_pk_bf16_f32 {dd}, {x}, {y}")
        A(f"v_lshlrev_b32 {a1}, 4, {lane}\nv_sub_u32 {a1}, {ska}, {a1}\nv_add_u32 {a1}, 560, {a1}")
        A(f"v_lshrrev_b32 {tm}, 5, {lane}\nv_lshl_add_u32 {a2}, {tm}, 4, {jc}\nv_lshlrev_b32 {a2}, 1, {a2}\nv_bfe_u32 {tm}, {lane}, 4, 1\nv_add_u32 {a2}, {a2}, {tm}\nv_lshlrev_b32 {a2}, 3, {a2}\nv_sub_u32 {a2}, {ska}, {a2}\nv_add_u32 {a2}, 1080, {a2}")
        A(f"v_lshrrev_b32 {tm}, 1, {jc}\nv_lshl_add_u32 {a3}, {g}, 4, {tm}\nv_lshlrev_b32 {a3}, 2, {a3}\nv_sub_u32 {a3}, {ska}, {a3}\nv_and_b32 {a4}, 1, {jc}")
        A(f"v_mul_u32_u24 {a4}, {KA_G2B - KA_G2A}, {a4}\nv_add_u32 {a3}, {a3}, {a4}\nv_add_u32 {a3}, {KA_G2A + 4*71}, {a3}")
        A(f"v_lshl_add_u32 {a4}, {g}, 5, {tm}\nv_lshlrev_b32 {a4}, 1, {a4}\nv_and_b32 {tm}, 1, {jc}\nv_sub_u32 {a4}, {a4}, {tm}\nv_lshlrev_b32 {a4}, 1, {a4}\nv_sub_u32 {a4}, {ska}, {a4}\nv_add_u32 {a4}, {KA_G3 + 4*39}, {a4}")
        cv(d[0], Y[3], Y[2]); cv(d[1], Y[2], Y[2]); cv(d[2], Y[1], Y[0]); cv(d[3], Y[0], Y[0]); cv(e[0], Y[2], Y[1])
        cv(e[1], Y[0], Y[1]); cv(e[2], Y[2], Y[3])
        z0 = V.alloc(); z1 = V.alloc(); zz = V.alloc(2, 2); x = V.alloc(2, 2); x2 = V.alloc()
        cv(z0, Z[0], Z[1]); cv(z1, Z[2], Z[3]); cv(zz[0], Z[0], Z[0]); cv(zz[1], Z[0], Z[0])
        A(f"v_cmp_eq_u32 vcc, 0, {lane}\nv_cndmask_b32 {dsk}, 0, {dsk}, vcc\nv_add_f32 {X[0]}, {X[0]}, {dsk}")
        cv(x[0], X[3], X[2]); cv(x[1], X[1], X[0]); cv(x2, X[2], X[1])
        W = dict(mw=['ka'])
        A("s_mov_b32 exec_hi, 0")
        A(f"ds_write_b128 {a1}, {d} offset:{KA_B + 4}", **W)
        A(f"ds_write_b16 {a1}, {d[0]} offset:{KA_A + 2}", **W)
        A(f"ds_write2_b32 {a1}, {d[1]}, {e[0]} offset0:1 offset1:2", **W)
        A(f"ds_write_b32 {a1}, {d[3]} offset:{KA_A + 12}", **W)
        A(f"ds_write_b16 {a1}, {d[3]} offset:{KA_A + 16}", **W)
        A(f"ds_write_b16 {a4}, {z0} offset:96\nds_write_b16_d16_hi {a4}, {z0} offset:64\nds_write_b16 {a4}, {z1} offset:32\nds_write_b16_d16_hi {a4}, {z1}", **W)
        A("s_not_b64 exec, exec")
        A(f"ds_write2_b32 {a3}, {e[1]}, {e[2]} offset0:8 offset1:0", **W)
        A(f"s_mov_b32 exec_hi, 1\nv_mov_b32 {tm}, {ska}")
        A(f"ds_write_b64 {tm}, {zz} offset:{KA_A + 58}\nds_write_b64 {tm}, {zz} offset:{KA_B + 60}", **W)
        A("s_mov_b64 exec, -1")
        A(f"ds_write_b64 {a2}, {x} offset:{KA_A}", **W)
        A(f"ds_write_b16 {a2}, {x[0]} offset:{KA_B + 2}\nds_write_b32 {a2}, {x2} offset:{KA_B + 4}\nds_write_b16_d16_hi {a2}, {x[1]} offset:{KA_B + 8}", **W)
        self.kgF = F
        V.free = mark | {self.prm.b + k for k in range(6)}

    @staticmethod
    def xk(s, t, ks):
        return Rg('a', s * 16 + t * 8 + ks * 4, 4)

    def weave(self, M, R, D, dper=4):
        A = self.A
        R = list(R); D = list(D)
        for k, m in enumerate(M):
            A(m)
            if R: A(R.pop(0))
            if D:
                if D[0].kind != 'vmem':
                    A(D.pop(0))
                    if not R and D and D[0].kind != 'vmem': A(D.pop(0))
                elif k % dper == dper - 1 or len(D) > len(M) - k - 1: A(D.pop(0))
        A(R); A(D)

    def kv_gemm(self):
        A, V = self.A, self.V
        t0, t1, t2, t3 = self.t; lane = self.lane; st0, st1 = self.st0, self.st1
        ax = V.alloc(8, 1); aw = V.alloc(4, 1)
        A(f"v_and_b32 {t0}, 15, {lane}\nv_lshrrev_b32 {t1}, 1, {t0}\nv_lshrrev_b32 {t2}, 4, {lane}\nv_xor_b32 {t1}, {t1}, {t2}")
        A(f"v_lshlrev_b32 {t0}, 7, {t0}\nv_lshl_add_u32 {t0}, {t1}, 4, {t0}\nv_add_u32 {ax[0]}, {self.swl}, {t0}")
        A(f"v_xor_b32 {ax[1]}, 64, {ax[0]}\nv_xor_b32 {ax[2]}, 4096, {ax[0]}\nv_xor_b32 {ax[3]}, 4096, {ax[1]}")
        for k in range(4): A(f"v_add_u32 {ax[4+k]}, 65536, {ax[k]}")
        self.atw = V.alloc()
        A(self.tr_addr(self.atw, 'w'))
        A(f"s_and_b32 {st0}, {self.sw}, 1\ns_lshl_b32 {st0}, {st0}, 6\ns_add_u32 {st0}, {st0}, 16384\nv_xor_b32 {aw[0]}, {st0}, {self.atw}\nv_xor_b32 {aw[1]}, 32, {aw[0]}")
        for k in range(2): A(f"v_add_u32 {aw[2+k]}, 65536, {aw[k]}")
        self.acck = acck = [[V.alloc(4, 4) for t in range(4)] for nt in range(2)]
        self.accv = accv = [[V.alloc(4, 4) for t in range(4)] for nt in range(2)]
        self.wphi = [[V.alloc(4, 4) for ft in range(2)] for h in range(2)]
        xo = [[[V.alloc(4, 4) for ks in range(2)] for t in range(2)] for b in range(2)]
        wf = [[[[V.alloc(4, 4) for ks in range(2)] for nt in range(2)] for p in range(2)] for b in range(2)]
        xfrag = lambda s, t, ks: self.xk(s, t, ks) if t < 2 else xo[s & 1][t - 2][ks]

        def rd(s):
            slot = (s % 3) * SLOT; hi = int(slot >= 65536); off = slot - 65536 * hi
            o = []
            rx = lambda t, ks: o.append(I(f"ds_read_b128 {xfrag(s,t,ks)}, {ax[4*hi + (t>>1)*2 + ks]} offset:{off + (t&1)*2048}"))

            def rw(p, nt, ks):
                for h in range(2): o.append(I(f"ds_read_b64_tr_b16 {wf[s&1][p][nt][ks][2*h:2*h+2]}, {aw[2*hi+nt]} offset:{off + p*8192 + ks*4096 + h*512}"))
            rw(0, 0, 0); rw(0, 0, 1)
            for t in range(4): rx(t, 0); rx(t, 1)
            rw(0, 1, 0); rw(0, 1, 1); rw(1, 0, 0); rw(1, 0, 1); rw(1, 1, 0); rw(1, 1, 1)
            return o

        def mm(s):
            o = []
            for p in range(2):
                for nt in range(2):
                    for t in range(4):
                        for ks in range(2):
                            acc = (acck, accv)[p][nt][t]; w = wf[s & 1][p][nt][ks]; x = xfrag(s, t, ks)
                            cc = '0' if (s == 0 and ks == 0) else acc
                            o.append(I(f"{MF} {acc}, {w}, {x}, {cc}" if p == 0 else f"{MF} {acc}, {x}, {w}, {cc}"))
            return o
        A("s_waitcnt vmtag(st0) lgkmcnt(0)\ns_barrier")
        self.stamp()
        A(rd(0))
        self.vcnt = vcnt = V.alloc()
        for s in range(16):
            if s < 15: A(f"s_waitcnt vmtag(st{s+1}) lgkmcnt(0)\ns_barrier")
            else: A("s_waitcnt lgkmcnt(0)\ns_barrier")
            R = rd(s + 1) if s < 15 else []
            D = self.issue_kv(s + 3) if s + 3 < 16 else []
            if s == 3:
                A(f"s_cmp_eq_u32 {self.sw}, 0\ns_cbranch_scc0 L_noci\ns_mov_b64 exec, 1\nv_mov_b32 {t0}, 0\nv_mov_b32 {t1}, 1")
                A(f"global_atomic_add {t0}, {t1}, {self.pdbg} sc1", nocount=True)
                A("s_mov_b64 exec, -1\nL_noci:")
            if s == 5:
                D = D + mk(f"s_lshl_b32 {st0}, {self.shp}, 12\nv_lshl_add_u32 {t0}, v0, 4, {st0}\ns_lshr_b32 {st1}, {self.swl}, 2\ns_add_u32 m0, {st1}, {L_UTILE}") + \
                    mk(f"global_load_lds_dwordx4 {t0}, {self.pphi}", tag="st8")
            if s == 9:
                R = R + mk(f"v_lshrrev_b32 {t0}, 2, {lane}\nv_lshlrev_b32 {t0}, 6, {t0}\nv_and_b32 {t1}, 3, {lane}\nv_lshl_add_u32 {t0}, {t1}, 3, {t0}") + \
                    mk(f"s_and_b32 {st0}, {self.sw}, 1\ns_lshl_b32 {st0}, {st0}, 11\ns_add_u32 {st1}, {st0}, {L_UTILE}\nv_add_u32 {t1}, {st1}, {t0}")
            if s == 10:
                R = R + mk(f"s_xor_b32 {st0}, {st0}, 2048\ns_add_u32 {st1}, {st0}, {L_UTILE}\nv_add_u32 {t2}, {st1}, {t0}")
                R += [I(f"ds_read_b64_tr_b16 {self.wphi[0][ft][2*h:2*h+2]}, {t1} offset:{32*ft + 1024*h}") for ft in range(2) for h in range(2)]
            if s == 11:
                R = R + [I(f"ds_read_b64_tr_b16 {self.wphi[1][ft][2*h:2*h+2]}, {t2} offset:{32*ft + 1024*h}") for ft in range(2) for h in range(2)]
            if s == 13: D = self.issue_q(0)
            if s == 14: D = self.issue_q(1) + mk(f"v_mov_b32 {t0}, 0\nglobal_load_dword {vcnt}, {t0}, {self.pdbg} sc1")
            if s == 15: D = self.issue_q(2)
            self.weave(mm(s), R, D, dper=3)
        V.release(ax, aw, xo, wf, self.vx)

    def xreduce(self, m, op, mid):
        A = self.A
        A(f"v_permlane16_swap_b32 {m[0]}, {m[1]}\n{op} {m[0]}, {m[0]}, {m[1]}")
        A(f"v_permlane16_swap_b32 {m[2]}, {m[3]}\n{op} {m[2]}, {m[2]}, {m[3]}")
        A(f"v_permlane32_swap_b32 {m[0]}, {m[2]}\n{op} {m[0]}, {m[0]}, {m[2]}")
        mid(m[0])
        A(f"v_mov_b32 {m[2]}, {m[0]}\nv_permlane32_swap_b32 {m[0]}, {m[2]}")
        A(f"v_mov_b32 {m[1]}, {m[0]}\nv_permlane16_swap_b32 {m[0]}, {m[1]}")
        A(f"v_mov_b32 {m[3]}, {m[2]}\nv_permlane16_swap_b32 {m[2]}, {m[3]}")

    def bc(self, r):
        return Rg('v', r.b & ~1, 2), r.b & 1

    def dual_exp(self, P):
        A, V = self.A, self.V
        mx = V.alloc(4, 2); mn = V.alloc(4, 2)
        for u in range(4):
            a, b = P[u]
            for m, o3, o2 in ((mx, 'v_max3_f32', 'v_max_f32'), (mn, 'v_min3_f32', 'v_min_f32')):
                A(f"{o3} {m[u]}, {a[0]}, {a[1]}, {a[2]}\n{o3} {m[u]}, {m[u]}, {a[3]}, {b[0]}\n{o3} {m[u]}, {m[u]}, {b[1]}, {b[2]}\n{o2} {m[u]}, {m[u]}, {b[3]}")
        for m, op in ((mx, 'v_max_f32'), (mn, 'v_min_f32')):
            self.xreduce([m[k] for k in range(4)], op, lambda r: A(f"v_mul_f32 {r}, {self.sL[0]}, {r}"))
        N = [(V.alloc(4, 2), V.alloc(4, 2)) for u in range(4)]
        for u in range(4):
            for h in range(2):
                for q in range(2):
                    src = P[u][h][2*q:2*q+2]; dn = N[u][h][2*q:2*q+2]
                    pr, se = self.bc(mn[u])
                    A(f"v_pk_fma_f32 {dn}, {src}, {self.sL}, {pr} op_sel:[0,0,{se}] op_sel_hi:[1,1,{se}] neg_lo:[1,0,0] neg_hi:[1,0,0]")
                    pr, se = self.bc(mx[u])
                    A(f"v_pk_fma_f32 {src}, {src}, {self.sL}, {pr} op_sel:[0,0,{se}] op_sel_hi:[1,1,{se}] neg_lo:[0,0,1] neg_hi:[0,0,1]")
                    for z in range(2): A(f"v_exp_f32 {src[z]}, {src[z]}\nv_exp_f32 {dn[z]}, {dn[z]}")
        V.release(mx, mn)
        return [P, N]

    def pack2(self, d, a, b):
        self.A(f"v_cvt_pk_bf16_f32 {d[0]}, {a[0]}, {a[1]}\nv_cvt_pk_bf16_f32 {d[1]}, {a[2]}, {a[3]}\n"
               f"v_cvt_pk_bf16_f32 {d[2]}, {b[0]}, {b[1]}\nv_cvt_pk_bf16_f32 {d[3]}, {b[2]}, {b[3]}")

    def spin(self, name, reload, check):
        A = self.A
        check()
        A(f"s_cbranch_vccnz L_{name}_retry\nL_{name}_ok:")
        save = self.c; self.c = self.tailc
        A(f"L_{name}_retry:\ns_mov_b32 {self.sspin}, 0\nL_{name}_loop:\ns_nop 7\ns_nop 7")
        reload()
        A("s_waitcnt vmcnt(0)")
        check()
        A(f"s_cbranch_vccz L_{name}_done\ns_add_u32 {self.sspin}, {self.sspin}, 1\ns_cmp_lt_u32 {self.sspin}, 0x80000\ns_cbranch_scc1 L_{name}_loop")
        A(f"L_{name}_done:\ns_nop 7\ns_branch L_{name}_ok")
        self.c = save

    def kv_epi(self):
        A, V = self.A, self.V
        t0, t1, t2, t3 = self.t; lane = self.lane; st0, st1, st2 = self.st0, self.st1, self.st2
        acck, accv = self.acck, self.accv
        vf = [[V.alloc(4, 4) for et in range(2)] for P in range(2)]
        av = V.alloc(); ap = V.alloc(); ar = V.alloc(2, 1)

        def part1():
            A(f"s_add_u32 {st0}, {self.swl}, {L_UP}\nv_lshl_add_u32 {av}, {lane}, 4, {st0}")
            for P in range(2):
                for et in range(2):
                    self.pack2(vf[P][et], accv[et][2*P], accv[et][2*P+1])
                    A(f"ds_write_b128 {av}, {vf[P][et]} offset:{(2*P+et)*1024}", mw=['vx'])
            Pk = []
            for t in range(4):
                kf = accv[0][t]; self.pack2(kf, acck[0][t], acck[1][t])
                for ft in range(2): A(f"{MF} {acck[ft][t]}, {self.wphi[0][ft]}, {kf}, 0")
                Pk.append((acck[0][t], acck[1][t]))
            E = self.dual_exp(Pk)
            A(f"v_and_b32 {t0}, 15, {lane}\nv_bfe_u32 {t1}, {lane}, 1, 2\nv_lshrrev_b32 {t2}, 4, {lane}\nv_xor_b32 {t1}, {t1}, {t2}\nv_lshlrev_b32 {t0}, 6, {t0}")
            A(f"v_lshl_add_u32 {t0}, {t1}, 4, {t0}\ns_lshl_b32 {st0}, {self.swl}, 1\nv_add_u32 {ap}, {st0}, {t0}")
            A(f"v_lshrrev_b32 {t0}, 2, {lane}\nv_bfe_u32 {t1}, {lane}, 3, 2\nv_and_b32 {t2}, 3, {lane}\nv_xor_b32 {t1}, {t1}, {t2}\nv_lshlrev_b32 {t0}, 6, {t0}")
            A(f"v_lshl_add_u32 {t0}, {t1}, 4, {t0}\ns_lshr_b32 {st1}, {self.sw}, 1\ns_lshl_b32 {st1}, {st1}, 12\ns_add_u32 {st1}, {st1}, {st0}")
            A(f"v_add_u32 {ar[0]}, {st1}, {t0}\nv_xor_b32 {ar[1]}, 16384, {ar[0]}")
            for sg in range(2):
                sm = V.alloc(4, 2); tp = [V.alloc(2, 2) for _ in range(4)]
                for u in range(4):
                    a, b = E[sg][u]
                    A(f"v_pk_add_f32 {tp[u]}, {a[0:2]}, {a[2:4]}\nv_pk_add_f32 {tp[u]}, {tp[u]}, {b[0:2]}\nv_pk_add_f32 {tp[u]}, {tp[u]}, {b[2:4]}\nv_add_f32 {sm[u]}, {tp[u][0]}, {tp[u][1]}")
                self.xreduce([sm[k] for k in range(4)], 'v_add_f32', lambda r: A(f"v_rcp_f32 {r}, {r}"))
                for u in range(4):
                    a, b = E[sg][u]; pr, se = self.bc(sm[u])
                    for x in (a[0:2], a[2:4], b[0:2], b[2:4]): A(f"v_pk_mul_f32 {x}, {x}, {pr} op_sel:[0,{se}] op_sel_hi:[1,{se}]")
                    d = accv[sg][u]; self.pack2(d, a, b)
                    A(f"ds_write_b128 {ap}, {d} offset:{sg*4096 + u*1024}", mw=['phi'])
                self.tmp_rel += [sm, tp]
            self.tmp_rel += [E[1]]
        self.tmp_rel = []
        A(self.blk(part1)); V.release(self.tmp_rel)
        A("s_waitcnt lgkmcnt(0)\ns_barrier")
        kvp = [V.alloc(4, 4) for et in range(2)]; zp = V.alloc(4, 4); ad = V.alloc(); az = V.alloc()

        def part2():
            pv = [[accv[P][et] for et in range(2)] for P in range(2)]
            A(f"v_xor_b32 {av}, 8192, {av}")
            ones = accv[0][2]
            for k in range(4): A(f"v_mov_b32 {ones[k]}, 0x3f803f80")
            pf = [[V.alloc(4, 4) for ft in range(2)] for ks in range(4)]
            for ks in range(4):
                for ft in range(2):
                    for h in range(2): A(f"ds_read_b64_tr_b16 {pf[ks][ft][2*h:2*h+2]}, {ar[ks>>1]} offset:{(ks&1)*2048 + h*1024 + 8*ft}")
                if ks < 2:
                    for et in range(2): A(f"ds_read_b128 {pv[ks][et]}, {av} offset:{(2*ks+et)*1024}")
            kv = [[acck[ft][et] for et in range(3)] for ft in range(2)]
            for ks in range(4):
                for ft in range(2):
                    for et in range(3):
                        b = ones if et == 2 else (vf[ks][et] if ks < 2 else pv[ks-2][et])
                        A(f"{MF} {kv[ft][et]}, {pf[ks][ft]}, {b}, {kv[ft][et] if ks else 0}")
            for et in range(2): self.pack2(kvp[et], kv[0][et], kv[1][et])
            self.pack2(zp, kv[0][2], kv[1][2])
            A(f"v_lshrrev_b32 {t0}, 5, {lane}\nv_and_b32 {t1}, 31, {lane}\nv_lshlrev_b32 {t1}, 4, {t1}\nv_lshl_add_u32 {ad}, {t0}, 13, {t1}")
            A(f"v_lshrrev_b32 {t2}, 4, {lane}\nv_lshlrev_b32 {az}, 8, {t2}")
            A(f"s_lshl_b32 {st0}, {self.shp}, 2\ns_add_u32 {st0}, {st0}, {self.sw}\ns_lshl_b32 {st0}, {st0}, 6\ns_add_u32 {st0}, {st0}, {self.srb}")
            A(f"s_lshl_b32 {st1}, {st0}, 4\ns_add_u32 {st1}, {st1}, {WS_P1Z}\ns_lshl_b32 {st0}, {st0}, 9\ns_add_u32 {st0}, {st0}, {WS_P1}\ns_add_u32 {st2}, {st0}, 16384")
            self.tmp_rel = [pf]
        A(self.blk(part2)); V.release(self.tmp_rel)
        self.spin("ci", lambda: A(f"v_mov_b32 {t0}, 0\nglobal_load_dword {self.vcnt}, {t0}, {self.pdbg} sc1"),
                  lambda: A(f"v_cmp_gt_u32 vcc, 256, {self.vcnt}"))
        A(f"buffer_store_dwordx4 {kvp[0]}, {ad}, {self.rws}, {st0} offen sc1\nbuffer_store_dwordx4 {kvp[1]}, {ad}, {self.rws}, {st2} offen sc1")
        A(f"s_mov_b32 exec_lo, 0x10001\ns_mov_b32 exec_hi, 0x10001\nbuffer_store_dwordx4 {zp}, {az}, {self.rws}, {st1} offen sc1\ns_mov_b64 exec, -1")
        if self.o['dump'] == 'kvp': self.dump(kvp + [zp])
        V.release(vf, av, ap, ar, kvp, zp, ad, az, acck, accv, self.vcnt)

    def q_gemm(self):
        A, V = self.A, self.V
        t0, t1, t2, t3 = self.t; lane = self.lane; st0, st1, st2 = self.st0, self.st1, self.st2
        aq = V.alloc(8, 1)
        A(f"s_and_b32 {st0}, {self.sw}, 1\ns_lshl_b32 {st0}, {st0}, 6\nv_xor_b32 {aq[0]}, {st0}, {self.atw}")
        for k in range(1, 4): A(f"v_xor_b32 {aq[k]}, {32*k}, {aq[0]}")
        for k in range(4): A(f"v_add_u32 {aq[4+k]}, 65536, {aq[k]}")
        self.accq = acc = [[V.alloc(4, 4) for t in range(2)] for nt in range(4)]
        wf = [[[V.alloc(4, 4) for ks in range(2)] for nt in range(4)] for b in range(2)]
        self.vo = vo = V.alloc(4, 1)
        A(f"v_lshrrev_b32 {t0}, 3, {lane}\nv_lshrrev_b32 {t1}, 4, {lane}\nv_lshlrev_b32 {t1}, 1, {t1}\nv_and_b32 {t2}, 7, {lane}\nv_xor_b32 {t1}, {t1}, {t2}\nv_lshlrev_b32 {t1}, 4, {t1}")
        A(f"v_lshl_add_u32 {vo[0]}, {t0}, 11, {t1}")
        for k in range(1, 4): A(f"v_add_u32 {vo[k]}, {15360*k}, {vo[0]}")

        def rd(s):
            base = self.QSLOT[s >> 2] * SLOT + (s & 3) * 8192; hi = int(base >= 65536); off = base - 65536 * hi
            return [I(f"ds_read_b64_tr_b16 {wf[s&1][nt][ks][2*h:2*h+2]}, {aq[4*hi+nt]} offset:{off + ks*4096 + h*512}")
                    for nt in range(4) for ks in range(2) for h in range(2)]

        def mm(s):
            return [I(f"{MF} {acc[nt][t]}, {wf[s&1][nt][ks]}, {self.xk(s,t,ks)}, {'0' if s == 0 and ks == 0 else acc[nt][t]}")
                    for nt in range(4) for t in range(2) for ks in range(2)]
        pl = V.alloc(8, 2); pz = V.alloc(); a1 = V.alloc(); a2 = V.alloc()
        s1 = self.S.alloc(); s1b = self.S.alloc(); s1z = self.S.alloc()

        def a1_addr():
            x = mk(f"s_lshl_b32 {st0}, {self.shp}, 4\ns_add_u32 {st0}, {st0}, {self.srb}\ns_lshl_b32 {s1z}, {st0}, 8\ns_add_u32 {s1z}, {s1z}, {WS_P1Z}")
            x += mk(f"s_lshl_b32 {s1}, {st0}, 13\ns_lshl_b32 {st1}, {self.sw}, 7\ns_add_u32 {s1}, {s1}, {st1}\ns_add_u32 {s1}, {s1}, {WS_P1}\ns_add_u32 {s1b}, {s1}, 4096")
            x += mk(f"v_lshrrev_b32 {t0}, 5, {lane}\nv_and_b32 {t1}, 31, {lane}\nv_lshlrev_b32 {t1}, 2, {t1}\nv_lshl_add_u32 {a1}, {t0}, 9, {t1}\nv_lshlrev_b32 {a2}, 2, {lane}")
            return x

        def a1_load():
            x = [I(f"buffer_load_dword {pl[i]}, {a1}, {self.rws}, {s1 if i < 4 else s1b} offen offset:{(i&3)*1024} sc1") for i in range(8)]
            return x + mk(f"buffer_load_dword {pz}, {a2}, {self.rws}, {s1z} offen sc1")

        def a1_check():
            A(f"v_max3_u32 {t0}, {pl[0]}, {pl[1]}, {pl[2]}\nv_max3_u32 {t1}, {pl[3]}, {pl[4]}, {pl[5]}\nv_max3_u32 {t0}, {t0}, {pl[6]}, {pl[7]}\nv_max3_u32 {t0}, {t0}, {t1}, {pz}")
            A(f"v_cmp_eq_u32 vcc, -1, {t0}")

        def a1_reduce():
            u = [V.alloc(2, 2) for _ in range(4)]; zz = V.alloc(2, 2); z2 = V.alloc(2, 2)
            for i in range(8):
                d = u[i] if i < 2 else u[2 + (i & 1)]
                A(f"v_lshlrev_b32 {d[0]}, 16, {pl[i]}\nv_and_b32 {d[1]}, 0xffff0000, {pl[i]}")
                if i >= 2: A(f"v_pk_add_f32 {u[i&1]}, {u[i&1]}, {d}")
            A(f"v_pk_add_f32 {u[0]}, {u[0]}, {u[1]}")
            A(f"v_permlane32_swap_b32 {u[0][0]}, {u[0][1]}\nv_add_f32 {u[0][0]}, {u[0][0]}, {u[0][1]}\nv_mov_b32 {u[0][1]}, {u[0][0]}\nv_permlane32_swap_b32 {u[0][0]}, {u[0][1]}")
            A(f"v_cvt_pk_bf16_f32 {u[1][0]}, {u[0][0]}, {u[0][1]}")
            A(f"s_lshl_b32 {st0}, {self.shp}, 4\ns_add_u32 {st0}, {st0}, {self.srb}\ns_lshl_b32 {st0}, {st0}, 2\ns_add_u32 {st0}, {st0}, {self.sw}\ns_lshl_b32 {st0}, {st0}, 7\ns_add_u32 {st0}, {st0}, {WS_P2}")
            A(f"v_and_b32 {a1}, 127, {a1}\nbuffer_store_dword {u[1][0]}, {a1}, {self.rws}, {st0} offen sc1")
            A(f"v_lshlrev_b32 {zz[0]}, 16, {pz}\nv_and_b32 {zz[1]}, 0xffff0000, {pz}")
            A(f"v_permlane32_swap_b32 {zz[0]}, {zz[1]}\nv_add_f32 {zz[0]}, {zz[0]}, {zz[1]}")
            A(f"v_mov_b32 {zz[1]}, {zz[0]}\nv_permlane16_swap_b32 {zz[0]}, {zz[1]}\nv_add_f32 {zz[0]}, {zz[0]}, {zz[1]}")
            for r in (4, 8): A(f"v_add_f32_dpp {zz[0]}, {zz[0]}, {zz[0]} row_ror:{r} row_mask:0xf bank_mask:0xf")
            A(f"v_mov_b32 {zz[1]}, {zz[0]}\nv_permlane32_swap_b32 {zz[0]}, {zz[1]}\nv_cvt_pk_bf16_f32 {z2[0]}, {zz[0]}, {zz[1]}")
            A(self.p2z_addr(st1))
            A(f"v_and_b32 {a2}, 12, {a2}\nbuffer_store_dword {z2[0]}, {a2}, {self.rws}, {st1} offen sc1")
            self.tmp_rel = [u, zz, z2]
        A("s_waitcnt vmtag(q2) lgkmcnt(0)\ns_barrier")
        A(rd(0))
        at = self.o['a1_at']
        for s in range(16):
            if s in (3, 7): A("s_waitcnt lgkmcnt(0)\ns_barrier")
            if s == 11: A("s_waitcnt vmtag(q3) lgkmcnt(0)\ns_barrier")
            if s == 15: A("s_waitcnt lgkmcnt(0)\ns_barrier")
            D = []
            if s == 0: D = self.issue_q(3)
            if s == 1: D = self.ut_load()
            if s in (3, 7, 11): D = self.issue_wo(self.QSLOT[s >> 2])
            if s == at - 3: D = D + a1_addr()
            if s == at - 2: D = D + a1_load()
            self.weave(mm(s), rd(s + 1) if s < 15 else [], D, dper=1)
            if s == 4: self.ut_store()
            if s == at:
                self.spin("a1", lambda: A(a1_load()), a1_check)
                A(self.blk(a1_reduce)); V.release(self.tmp_rel)
        V.release(aq, wf, pl, pz, a1, a2, self.vw, self.atw); self.S.release(s1, s1b, s1z)

    def ut_load(self):
        V = self.V; st0 = self.st0
        self.utr = [V.alloc(4, 4) for _ in range(4)]; self.uta = V.alloc()
        x = mk(f"s_lshl_b32 {st0}, {self.shp}, 4\ns_add_u32 {st0}, {st0}, {self.srb}\ns_lshl_b32 {st0}, {st0}, 14\ns_add_u32 {st0}, {st0}, {self.swl}\nv_lshlrev_b32 {self.uta}, 4, {self.lane}")
        return x + [I(f"buffer_load_dwordx4 {self.utr[i]}, {self.uta}, {self.rws}, {st0} offen offset:{1024*i} sc1") for i in range(4)]

    def ut_store(self):
        A, V = self.A, self.V
        self.sut = self.S.alloc(); z = V.alloc(2, 2); t0 = self.t[0]
        A(f"s_mul_i32 {self.sut}, {self.sw}, {UT_W}\ns_add_u32 {self.sut}, {self.sut}, {L_UP}\nv_mov_b32 {z[0]}, 0\nv_mov_b32 {z[1]}, 0")
        A(f"v_lshl_add_u32 {t0}, {self.lane}, 3, {self.sut}\nv_add_u32 {self.uta}, {self.sut}, {self.uta}\nds_write_b64 {t0}, {z}")
        for i in range(4): A(f"ds_write_b128 {self.uta}, {self.utr[i]} offset:{480 + 1024*i}")
        V.release(self.utr, self.uta, z)

    def q_epi(self):
        A, V = self.A, self.V
        t0, t1, t2, t3 = self.t; lane = self.lane; st0, st1, st2 = self.st0, self.st1, self.st2
        acc = self.accq
        self.eq = eq = [[V.alloc(4, 4) for u in range(4)] for sg in range(2)]
        ld = [V.alloc(4, 4) for _ in range(3)]; a1 = V.alloc(); a2 = V.alloc()
        s2 = self.S.alloc(); s2z = self.S.alloc()

        def load():
            A(f"buffer_load_dwordx4 {ld[0]}, {a1}, {self.rws}, {s2} offen sc1\nbuffer_load_dwordx4 {ld[1]}, {a1}, {self.rws}, {s2} offen offset:1024 sc1")
            A(f"buffer_load_dwordx4 {ld[2]}, {a2}, {self.rws}, {s2z} offen sc1")

        def part():
            P = []
            for h in range(2):
                for t in range(2):
                    qf = eq[0][2*h+t]; self.pack2(qf, acc[2*h][t], acc[2*h+1][t])
                    for ft in range(2): A(f"{MF} {acc[2*h+ft][t]}, {self.wphi[h][ft]}, {qf}, 0")
                    P.append((acc[2*h][t], acc[2*h+1][t]))
            E = self.dual_exp(P)
            for sg in range(2):
                for u in range(4): self.pack2(eq[sg][u], *E[sg][u])
            self.tmp_rel = [E[1]]
        b = self.blk(part); V.release(self.tmp_rel)
        A(f"s_lshl_b32 {s2z}, {self.shp}, 2\ns_add_u32 {s2z}, {s2z}, {self.sw}\ns_lshl_b32 {s2}, {s2z}, 11\ns_add_u32 {s2}, {s2}, {WS_P2}\ns_lshl_b32 {s2z}, {s2z}, 7\ns_add_u32 {s2z}, {s2z}, {WS_P2Z}")
        A(f"v_lshlrev_b32 {a1}, 4, {lane}\nv_and_b32 {a2}, 48, {lane}")
        k = len(b) // 3
        A(b[:k]); load(); A(b[k:])

        def check():
            A(f"v_max3_u32 {t0}, {ld[0][0]}, {ld[0][1]}, {ld[0][2]}\nv_max3_u32 {t1}, {ld[0][3]}, {ld[1][0]}, {ld[1][1]}\nv_max3_u32 {t0}, {t0}, {ld[1][2]}, {ld[1][3]}")
            A(f"v_max3_u32 {t1}, {t1}, {ld[2][0]}, {ld[2][1]}\nv_max3_u32 {t0}, {t0}, {ld[2][2]}, {ld[2][3]}\nv_max_u32 {t0}, {t0}, {t1}\nv_cmp_eq_u32 vcc, -1, {t0}")
        self.stamp()
        self.spin("a2", load, check)
        self.stamp()
        A(f"v_and_b32 {t0}, 1, {lane}\nv_cmp_eq_u32 vcc, 0, {t0}\nv_mov_b32 {t1}, 0x3f803f80")
        for k in range(4): A(f"v_cndmask_b32 {ld[2][k]}, {t1}, {ld[2][k]}, vcc")
        self.kvx = (ld, a1, a2); self.S.release(s2, s2z)

    def o_phase(self, xbase):
        A, V = self.A, self.V
        t0, t1, t2, t3 = self.t; lane = self.lane; st0, st1, st2 = self.st0, self.st1, self.st2
        ld, a1, a2 = self.kvx; eq = self.eq
        A(f"s_mul_i32 {st0}, {self.sw}, 3072\ns_add_u32 {st0}, {st0}, {xbase}\nv_add_u32 {a2}, {st0}, {a1}")
        for k in range(3): A(f"ds_write_b128 {a2}, {ld[k]} offset:{1024*k}")
        A(f"s_and_b32 {st0}, {self.sw}, 1\ns_mul_i32 {st1}, {st0}, 3072\ns_add_u32 {st1}, {st1}, {xbase}\nv_add_u32 {t0}, {st1}, {a1}")
        A(f"s_xor_b32 {st1}, {st0}, 1\ns_mul_i32 {st1}, {st1}, 3072\ns_add_u32 {st1}, {st1}, {xbase}\nv_add_u32 {t1}, {st1}, {a1}")
        A("s_waitcnt lgkmcnt(0)\ns_barrier")
        V.release(self.accq, self.wphi)

        def part():
            kv = [[[V.alloc(4, 4) for k in range(3)] for sg in range(2)] for h in range(2)]
            for h in range(2):
                for k in (2, 0, 1):
                    for sg in range(2): A(f"ds_read_b128 {kv[h][sg][k]}, {(t0, t1)[h]} offset:{sg*6144 + 1024*k}")
            A(f"s_lshl_b32 {st1}, {self.shp}, 1\ns_add_u32 {st1}, {st1}, {st0}\ns_lshl_b32 {st1}, {st1}, 10\ns_add_u32 {st1}, {st1}, {self.skx}\ns_add_u32 {st1}, {st1}, {WS_O}")
            so = [[self.S.alloc() for t in range(2)] for h in range(2)]
            A(f"s_mov_b32 {so[0][0]}, {st1}\ns_add_u32 {so[0][1]}, {st1}, 32768\ns_xor_b32 {so[1][0]}, {so[0][0]}, 1024\ns_xor_b32 {so[1][1]}, {so[0][1]}, 1024")
            rel = [kv]
            for h in range(2):
                for t in range(2):
                    u = 2 * h + t
                    N = [[V.alloc(4, 4) for k in range(3)] for sg in range(2)]
                    for k in (2, 0, 1):
                        for sg in range(2): A(f"{MF} {N[sg][k]}, {kv[h][sg][k]}, {eq[sg][u]}, 0")
                    p, m = N[0][2], N[1][2]
                    A(f"v_rcp_f32 {p[1]}, {p[1]}\nv_rcp_f32 {m[1]}, {m[1]}\nv_fmaak_f32 {p[0]}, {p[0]}, {p[1]}, {hex(f32(1e-6))}\nv_fmac_f32 {p[0]}, {m[0]}, {m[1]}")
                    A(f"v_rcp_f32 {p[0]}, {p[0]}\nv_mul_f32 {p[2]}, {p[1]}, {p[0]}\nv_mul_f32 {p[3]}, {m[1]}, {p[0]}")
                    for k in range(2):
                        for q in range(2):
                            x, y = N[0][k][2*q:2*q+2], N[1][k][2*q:2*q+2]
                            A(f"v_pk_mul_f32 {x}, {x}, {p[2:4]} op_sel:[0,0] op_sel_hi:[1,0]\nv_pk_fma_f32 {x}, {y}, {p[2:4]}, {x} op_sel:[0,1,0] op_sel_hi:[1,1,1]")
                    self.pack2(m, N[0][0], N[0][1])
                    A(f"buffer_store_dwordx4 {m}, {a1}, {self.rws}, {so[h][t]} offen sc1", tag="ost")
                    rel.append(N)
            self.tmp_rel = rel; self.S.release(so)
        A(self.blk(part)); V.release(self.tmp_rel, ld, a1, a2, eq)

    def conv(self):
        A, V = self.A, self.V
        t0, t1, t2, t3 = self.t; lane = self.lane; st0, st1, st2 = self.st0, self.st1, self.st2
        ska, sut = self.ska, self.sut
        acc = [V.alloc(4, 4) for T in range(8)]
        au = V.alloc(); ag = V.alloc(); at = V.alloc(2, 1)
        first = [True] * 8

        def mac(T, a, b):
            A(f"{MF} {acc[T]}, {a}, {b}, {'0' if first[T] else acc[T]}"); first[T] = False
        uoff = lambda q: 480 + 64 * q - 32

        def part1():
            mk_ = [V.alloc(4, 4) for _ in range(7)]
            A(f"v_lshlrev_b32 {t0}, 4, {lane}\nv_add_u32 {t1}, 4096, {t0}")
            for k in range(7): A(f"global_load_dwordx4 {mk_[k]}, {t0 if k < 4 else t1}, {self.ptab} offset:{1024*(k&3)}", lat=120)
            A(f"v_and_b32 {t2}, 15, {lane}\nv_lshrrev_b32 {t3}, 4, {lane}\nv_lshlrev_b32 {au}, 5, {t2}\nv_lshl_add_u32 {au}, {t3}, 4, {au}\nv_add_u32 {au}, {sut}, {au}")
            A(f"v_lshlrev_b32 {ag}, 2, {t3}\nv_sub_u32 {ag}, {ag}, {t2}\nv_lshl_add_u32 {ag}, {ag}, 2, {ska}\nv_add_u32 {ag}, {KA_G2A}, {ag}")
            x = V.alloc(); y = V.alloc()
            A(f"v_lshlrev_b32 {x}, 3, {t3}\nv_sub_u32 {x}, {x}, {t2}\nv_lshl_add_u32 {x}, {x}, 1, {ska}\nv_and_b32 {y}, 1, {t2}\nv_mul_u32_u24 {y}, {KA_B + 2}, {y}")
            A(f"v_sub_u32 {x}, {x}, {y}\nv_add_u32 {at[0]}, {KA_B + 1056 - 1024}, {x}\nv_add_u32 {at[1]}, 512, {at[0]}")
            G2 = [[V.alloc(4, 4) for D in range(3)] for ab in range(2)]; G3 = [V.alloc(4, 4) for D in range(4)]

            def rg(d, o):
                A(f"ds_read2_b32 {d[0:2]}, {ag} offset0:{o} offset1:{o+1}\nds_read2_b32 {d[2:4]}, {ag} offset0:{o+2} offset1:{o+3}")
            for ab in range(2):
                for D in range(3): rg(G2[ab][D], ab * 64 + 79 - 16 * (D + 2))
            for D in range(4): rg(G3[D], (KA_G3 - KA_G2A) // 4 + 127 - 16 * (D + 4))
            A(f"v_mov_b32 {y}, {ska}\nds_read_u16 {x}, {y} offset:{KA_G2B + 66}\nv_lshl_or_b32 {x}, {x}, 16, {x}")
            for k in range(4): A(f"v_and_b32 {mk_[6][k]}, {mk_[6][k]}, {x}")
            U = [[V.alloc(4, 4) for k in range(2)] for b in range(3)]
            Wd = [[V.alloc(4, 4) for k in range(6)] for b in range(2)]
            Wf = [[V.alloc(4, 4) for k in range(3)] for b in range(2)]
            for Tj in range(6):
                u0, u1 = U[Tj % 3]; wd = Wd[Tj & 1]; wf = Wf[Tj & 1]
                A(f"ds_read_b128 {u0}, {au} offset:{uoff(8*Tj)}\nds_read_b128 {u1}, {au} offset:{uoff(8*Tj) - 16}")
                nty = 6 if Tj < 4 else 4
                for k in range(nty): A(f"{MF} {wd[k]}, {u1 if k in (3, 5) else u0}, {mk_[k]}, 0")
                if Tj < 4: mac(Tj + 4, mk_[6], u0)
                for p in range(nty // 2):
                    for r in range(4): A(f"v_cvt_pk_bf16_f32 {wf[p][r]}, {wd[2*p][r]}, {wd[2*p+1][r]}")
                for D in range(3):
                    if Tj + D + 2 < 8:
                        for ab in range(2): mac(Tj + D + 2, wf[ab], G2[ab][D])
                for D in range(4):
                    if Tj + D + 4 < 8: mac(Tj + D + 4, wf[2], G3[D])
            self.tmp_rel = [mk_, x, y, G2, G3, U, Wd, Wf]
        A(self.blk(part1)); V.release(self.tmp_rel)
        A(self.flag_addr(st1))
        A(f"v_mov_b32 {t0}, {st1}\nv_mov_b32 {t1}, 0\ns_waitcnt vmtag(ost)\nbuffer_store_dword {t1}, {t0}, {self.rws}, 0 offen sc1")

        def part2():
            Tp = [V.alloc(4, 4) for s in range(17)]
            order = [0, 8, 16, 7, 15, 6, 14, 5, 13, 4, 12, 3, 11, 2, 10, 1, 9]
            NU = 10
            U = [V.alloc(4, 4) for _ in range(NU)]
            n = 0
            for res in (0, 7, 6, 5, 4, 3, 2, 1):
                ss = [s for s in range(17) if s % 8 == res]
                for s in ss:
                    o = 16 * (16 - s); b = int(o >= 128); o -= 128 * b
                    A(f"ds_read2_b32 {Tp[s][0:2]}, {at[b]} offset0:{o} offset1:{o+1}\nds_read2_b32 {Tp[s][2:4]}, {at[b]} offset0:{o+2} offset1:{o+3}")
                for q in range(-7, 57):
                    if (-q) % 8 != res: continue
                    u = U[n % NU]; n += 1
                    A(f"ds_read_b128 {u}, {au} offset:{uoff(q)}", mr=['u'])
                    for s in ss:
                        T = (q + s) // 8
                        if T < 8: mac(T, Tp[s], u)
            A(f"v_and_b32 {t2}, 15, {lane}\nv_lshrrev_b32 {t3}, 4, {lane}\nv_lshlrev_b32 {t2}, 5, {t2}\nv_lshl_add_u32 {t2}, {t3}, 3, {t2}\nv_add_u32 {t2}, {sut}, {t2}")
            for T in range(8):
                A(f"v_cvt_pk_bf16_f32 {acc[T][0]}, {acc[T][0]}, {acc[T][1]}\nv_cvt_pk_bf16_f32 {acc[T][1]}, {acc[T][2]}, {acc[T][3]}")
                A(f"ds_write_b64 {t2}, {acc[T][0:2]} offset:{512*T}", mw=['u'])
            A(f"v_bfe_u32 {t0}, {lane}, 2, 2\nv_mul_u32_u24 {t0}, {UT_W}, {t0}\nv_lshl_add_u32 {t0}, {t3}, 5, {t0}\nv_and_b32 {t1}, 3, {lane}\nv_lshl_add_u32 {t0}, {t1}, 3, {t0}")
            A(f"s_lshr_b32 {st0}, {self.swl}, 2\ns_add_u32 {st0}, {st0}, {L_UP}\nv_add_u32 {ag}, {st0}, {t0}\nv_lshlrev_b32 {at[0]}, 12, {lane}")
            A(f"s_lshl_b32 {st0}, {self.shp}, 4\ns_add_u32 {st0}, {st0}, {self.srb}\ns_lshl_b32 {st0}, {st0}, 3\ns_lshl_b32 {st1}, {self.sw}, 21\ns_add_u32 {st0}, {st0}, {st1}\ns_add_u32 {st0}, {st0}, 2048")
            self.tmp_rel = [Tp, U]
        b = self.blk(part2, keep_mfma_order=True)
        self.conv_mid(b); V.release(self.tmp_rel)
        A("s_waitcnt vmtag(wo) lgkmcnt(0)\ns_barrier")
        for i in range(8): A(f"ds_read_b64_tr_b16 {acc[i][0:2]}, {ag} offset:{128*i}")
        self.ystore = []
        for i in range(8):
            self.ystore += mk(f"buffer_store_dwordx2 {acc[i][0:2]}, {at[0]}, {self.rout}, {st0} offen")
            if i < 7: self.ystore += mk(f"s_add_u32 {st0}, {st0}, {64*4096}")
        A(self.ystore)
        V.release(acc, au, ag, at)

    def conv_mid(self, b):
        A, V = self.A, self.V
        lane = self.lane
        fl = V.alloc(); fa = V.alloc(); self.ao = ao = V.alloc(); sf = self.S.alloc(); so = self.S.alloc()
        n = len(b); k1 = int(n * self.o.get('poll_at', 0.35)); k2 = int(n * self.o.get('chk_at', 0.75))
        A(f"s_lshl_b32 {so}, {self.srb2}, 2\ns_add_u32 {so}, {so}, {self.sw}\ns_lshl_b32 {sf}, {so}, 6\ns_add_u32 {sf}, {sf}, {WS_FL}\ns_lshl_b32 {so}, {so}, 16\ns_add_u32 {so}, {so}, {WS_O}")
        A(f"v_and_b32 {fa}, 15, {lane}\nv_lshlrev_b32 {fa}, 2, {fa}\nv_lshlrev_b32 {ao}, 4, {lane}")
        load = lambda: A(f"buffer_load_dword {fl}, {fa}, {self.rws}, {sf} offen sc1")
        A(b[:k1]); load(); A(b[k1:k2])
        self.stamp()
        self.spin("fb", load, lambda: A(f"v_cmp_ne_u32 vcc, 0, {fl}"))
        self.stamp()
        L = []
        so2 = sf
        L += mk(f"s_add_u32 {so2}, {so}, 32768")
        for hq in range(8):
            for hh in range(4):
                for t in range(2):
                    h = 4 * hq + hh
                    L += mk(f"buffer_load_dwordx4 {Rg('a', h*8 + t*4, 4)}, {ao}, {self.rws}, {(so, so2)[t]} offen offset:{1024*hh} sc1")
            if hq < 7: L += mk(f"s_add_u32 {so}, {so}, 4096\ns_add_u32 {so2}, {so2}, 4096")
        npre = self.o.get('opre', 24)
        pre = []
        while sum(i.kind == 'vmem' for i in pre) < npre: pre.append(L.pop(0))
        rest = b[k2:]; step = max(1, len(rest) // len(pre))
        for k, i in enumerate(rest):
            A(i)
            if pre and k % step == 0: A(pre.pop(0))
        A(pre)
        self.oloads = L
        V.release(fl, fa)

    def gemm2(self):
        A, V = self.A, self.V
        t0, t1, t2, t3 = self.t; lane = self.lane; st0, st1 = self.st0, self.st1
        aw = V.alloc(8, 1)
        A(self.tr_addr(aw[0], 'o'))
        for k in range(1, 4): A(f"v_xor_b32 {aw[k]}, {32*k}, {aw[0]}")
        for k in range(4): A(f"v_add_u32 {aw[4+k]}, 65536, {aw[k]}")
        acc = [[V.alloc(4, 4) for t in range(2)] for nt in range(4)]
        wf = [[[V.alloc(4, 4) for ks in range(2)] for nt in range(4)] for b in range(2)]

        def rd(s):
            base = s * 8192; hi = int(base >= 65536); off = base - 65536 * hi
            return [I(f"ds_read_b64_tr_b16 {wf[s&1][nt][ks][2*h:2*h+2]}, {aw[4*hi+nt]} offset:{off + ks*4096 + h*2048}")
                    for nt in range(4) for ks in range(2) for h in range(2)]

        def mm(s):
            return [I(f"{MF} {acc[nt][t]}, {wf[s&1][nt][ks]}, {Rg('a', (2*s+ks)*8 + t*4, 4)}, {'0' if s == 0 and ks == 0 else acc[nt][t]}")
                    for nt in range(4) for t in range(2) for ks in range(2)]
        A(rd(0))
        L = self.oloads
        for s in range(16):
            D = []
            while L and sum(i.kind == 'vmem' for i in D) < 5: D.append(L.pop(0))
            self.weave(mm(s), rd(s + 1) if s < 15 else [], D, dper=3)
        assert not L

        def epi():
            A(f"v_and_b32 {t0}, 15, {lane}\nv_lshlrev_b32 {t0}, 12, {t0}\nv_bfe_u32 {t1}, {lane}, 4, 1\nv_lshl_add_u32 {t0}, {t1}, 5, {t0}\nv_lshrrev_b32 {t1}, 5, {lane}\nv_lshl_add_u32 {t0}, {t1}, 4, {t0}")
            A(f"s_lshl_b32 {st0}, {self.srb2}, 2\ns_add_u32 {st0}, {st0}, {self.sw}\ns_lshl_b32 {st0}, {st0}, 17\ns_lshl_b32 {st1}, {self.scb2}, 7\ns_add_u32 {st0}, {st0}, {st1}\ns_add_u32 {st1}, {st0}, 65536")
            for pr in range(2):
                for t in range(2):
                    d = wf[0][2*pr + t][0]
                    self.pack2(d, acc[2*pr][t], acc[2*pr+1][t])
                    A(f"v_permlane16_swap_b32 {d[0]}, {d[2]}\nv_permlane16_swap_b32 {d[1]}, {d[3]}")
                    A(f"buffer_store_dwordx4 {d}, {t0}, {self.rout}, {(st0, st1)[t]} offen offset:{64*pr}")
        A(self.blk(epi))
        V.release(aw, acc, wf, self.ao)

    def build(self):
        A, o = self.A, self.o
        self.prologue()
        A(self.blk(self.kgen))
        if o['dump'] == 'kg': self.dump(self.kgF)
        self.clears()
        self.utrans()
        self.stamp()
        self.kv_gemm()
        self.stamp()
        self.kv_epi()
        self.stamp()
        self.q_gemm()
        self.stamp()
        self.q_epi()
        self.o_phase_wrap()
        self.stamp()
        self.conv()
        self.stamp()
        self.gemm2()
        if o['stamps']:
            self.stamp()
            A("s_waitcnt vmcnt(0)")
            self.stamp()
            t0, t1 = self.t[:2]
            A(f"s_lshl_b32 {self.st0}, s2, 2\ns_add_u32 {self.st0}, {self.st0}, {self.sw}\ns_lshl_b32 {self.st0}, {self.st0}, 6\ns_add_u32 {self.st0}, {self.st0}, {WS_STAMP}\nv_mov_b32 {t0}, {self.st0}")
            for k in range(self.nstamp): A(f"v_mov_b32 {t1}, {self.sst[2*k]}\nbuffer_store_dword {t1}, {t0}, {self.rws}, 0 offen offset:{4*k}")
        A("L_end:\ns_endpgm")
        body = finalize(self.c)
        self.nbytes = align_stream.bytes; self.nbad = align_stream.bad
        tail = finalize(self.tailc, align=False)
        tab = mask_table()
        data = ".p2align 8\nL_tab:\n" + "".join(".long " + ",".join(hex(v) for v in tab[k:k+8]) + "\n" for k in range(0, len(tab), 8)) + "L_codeend:\n"
        hdr = open('concat_heads__linear_kernel_hedgehog__ssm_conv_s4d__prompt.s.ref').read().split('; Override launch')[0]
        s = hdr + f"; @launch grid=(256,1,1) block=(256,1,1) lds={LDS_BYTES}\n"
        s += '.amdgcn_target "amdgcn-amd-amdhsa--gfx950"\n.text\n' + f".globl {KNAME}\n.p2align 8\n.type {KNAME},@function\n{KNAME}:\n"
        s += text_of(body) + text_of(tail) + data
        s += f""".section .rodata,"a"
.p2align 6
.amdhsa_kernel {KNAME}
  .amdhsa_next_free_vgpr 512
  .amdhsa_next_free_sgpr 102
  .amdhsa_accum_offset 256
  .amdhsa_group_segment_fixed_size 0
  .amdhsa_kernarg_size 112
  .amdhsa_user_sgpr_count 2
  .amdhsa_user_sgpr_kernarg_segment_ptr 1
  .amdhsa_system_sgpr_workgroup_id_x 1
.end_amdhsa_kernel
"""
        return s

    def o_phase_wrap(self):
        self.o_phase(self.QSLOT[3] * SLOT)
        self.A("s_barrier")
        self.A(self.issue_wo(self.QSLOT[3]))
        self.V.release(self.vo)


if __name__ == "__main__":
    g = G(); s = g.build()
    open(sys.argv[1] if len(sys.argv) > 1 else "k.s", "w").write(s)
    print("code bytes", g.nbytes, "straddles", g.nbad, "vgpr hi", g.V.hi, "sgpr hi", g.S.hi)
```

```python
import sys, struct, math
from asmlib import *

KNAME = "concat_heads__linear_kernel_hedgehog__ssm_conv_s4d__prompt_kernel"
MF = "v_mfma_f32_16x16x32_bf16"
LOG2E = 0x3fb8aa3b
WS_UT = 0
WS_O = 4 << 20
WS_P1 = 8 << 20
WS_P1Z = 10 << 20
WS_P2 = WS_P1Z + (1 << 16)
WS_P2Z = WS_P2 + (1 << 17)
WS_FL = WS_P2Z + (1 << 13)
WS_STAMP = 12 << 20
WS_DUMP = 16 << 20
WS_SIZE = 0x10000000
SLOT = 32768
L_SCR = 3 * SLOT
SCR_W = 8704
L_UP = 4 * SLOT
UT_W = 4672
L_UTILE = L_SCR + 4 * SCR_W
L_KA = L_UP + 4 * UT_W
KA_W = 3200
KA_A, KA_B, KA_G2A, KA_G2B, KA_G3 = 0, 1196, 2336, 2592, 2848
assert L_UTILE + 16384 <= L_KA and L_KA + 4 * KA_W <= 163840
LDS_BYTES = 163840


def f32(x):
    return struct.unpack('<I', struct.pack('<f', x))[0]


def mask_table():
    out = []
    types = [(16, 4, 1), (16, 8, 2), (16, 12, 1), (24, 16, 2), (16, 8, 3), (24, 16, 4)]
    for (off, pw, hw) in types:
        for l in range(64):
            j, g = l & 15, l >> 4
            v = [0x3F80 if abs((8 * g + e - off) - (j - pw)) <= hw else 0 for e in range(8)]
            out += [v[2 * p] | v[2 * p + 1] << 16 for p in range(4)]
    for l in range(64):
        j, g = l & 15, l >> 4
        v = [0xFFFF if (j - (8 * g + e) + 16 + 1024) in (1027, 1028) else 0 for e in range(8)]
        out += [v[2 * p] | v[2 * p + 1] << 16 for p in range(4)]
    return out


class G:
    def __init__(self, **o):
        self.o = dict(ra=1, rc=1, win=2, stamps=0, dump=None, stop=None, sched=1, a1_at=6, codepf=1)
        self.o.update(o)
        self.c = []
        self.tailc = []
        self.V = Regs('v', 1, 256)
        self.S = Regs('s', 3, 100)
        self.nstamp = 0
        self.ndump = 0

    def A(self, x, **k):
        self.c.extend(mk(x, **k))

    def blk(self, fn, **kw):
        save = self.c; self.c = []
        fn()
        b = self.c; self.c = save
        return schedule(b, **kw) if self.o['sched'] else b

    def stamp(self):
        if self.o['stamps']:
            k = self.nstamp; self.nstamp += 1
            self.A(f"s_memrealtime {self.sst[2*k:2*k+2]}", fence=True)
            self.A("s_waitcnt lgkmcnt(0)")

    def dump(self, regs):
        t = self.V.alloc()
        self.A(f"v_lshlrev_b32 {t}, 4, v0")
        for r in regs:
            self.A(f"s_lshl_b32 {self.st0}, s2, 18\ns_add_u32 {self.st0}, {self.st0}, {WS_DUMP + self.ndump * 4096}")
            self.A(f"buffer_store_dwordx4 {r}, {t}, {self.rws}, {self.st0} offen")
            self.ndump += 1
        self.A("s_waitcnt vmcnt(0)")
        self.V.release(t)

    def prologue(self):
        A, V, S, o = self.A, self.V, self.S, self.o
        self.rx, self.rw, self.rwo, self.ru, self.rout, self.rws = [S.alloc(4, 4) for _ in range(6)]
        self.pp = S.alloc(12, 4)
        self.pphi = S.alloc(2, 2); self.pdbg = S.alloc(2, 2); self.ptab = S.alloc(2, 2)
        self.sL = S.alloc(2, 2)
        self.srb, self.shp, self.sw, self.srot, self.st0, self.st1, self.st2 = [S.alloc() for _ in range(7)]
        self.skx, self.skw, self.swl, self.swk, self.srb2, self.scb2, self.sspin = [S.alloc() for _ in range(7)]
        if o['stamps']: self.sst = S.alloc(28, 2)
        st0, st1, st2 = self.st0, self.st1, self.st2
        A("s_cmp_ge_u32 s2, 256\ns_cbranch_scc1 L_end")
        A(f"s_load_dwordx2 {self.rx[0:2]}, s[0:1], 0\ns_load_dwordx2 {self.rw[0:2]}, s[0:1], 8")
        A(f"s_load_dwordx4 {self.pp[0:4]}, s[0:1], 40\ns_load_dwordx4 {self.pp[4:8]}, s[0:1], 56\ns_load_dwordx4 {self.pp[8:12]}, s[0:1], 72")
        A(f"s_load_dwordx2 {self.ru[0:2]}, s[0:1], 32\ns_load_dwordx2 {self.rws[0:2]}, s[0:1], 104")
        A(f"s_load_dwordx2 {self.pphi}, s[0:1], 16\ns_load_dwordx2 {self.rwo[0:2]}, s[0:1], 24")
        A(f"s_load_dwordx2 {self.rout[0:2]}, s[0:1], 88\ns_load_dwordx2 {self.pdbg}, s[0:1], 96")
        if o['stamps']:
            A(f"s_memrealtime {self.sst[0:2]}", fence=True); self.nstamp = 1
        self.lane = lane = V.alloc()
        t0, t1, t2, t3 = self.t = [V.alloc() for _ in range(4)]
        A(f"v_lshrrev_b32 {t0}, 6, v0\nv_and_b32 {lane}, 63, v0\nv_readfirstlane_b32 {self.sw}, {t0}")
        A(f"s_bfe_u32 {st0}, s2, 0x30003\ns_lshr_b32 {st1}, s2, 6")
        A(f"s_and_b32 {self.srb}, s2, 1\ns_lshl_b32 {self.srb}, {self.srb}, 3\ns_add_u32 {self.srb}, {self.srb}, {st0}")
        A(f"s_and_b32 {self.shp}, s2, 6\ns_lshl_b32 {self.shp}, {self.shp}, 1\ns_add_u32 {self.shp}, {self.shp}, {st1}")
        A(f"s_mul_i32 {self.srot}, {st0}, {o['ra']}\ns_mul_i32 {st1}, {st1}, {o['rc']}\ns_add_u32 {self.srot}, {self.srot}, {st1}")
        A(f"s_and_b32 {self.srb2}, s2, 7\ns_lshl_b32 {self.srb2}, {self.srb2}, 1\ns_bfe_u32 {st1}, s2, 0x10003\ns_add_u32 {self.srb2}, {self.srb2}, {st1}\ns_lshr_b32 {self.scb2}, s2, 4")
        self.vx = vx = V.alloc(4, 1); self.vw = vw = V.alloc(4, 1)
        A(f"v_lshrrev_b32 {t0}, 3, {lane}\nv_lshrrev_b32 {t1}, 4, {lane}\nv_and_b32 {t2}, 7, {lane}\nv_xor_b32 {t3}, {t1}, {t2}")
        A(f"v_lshlrev_b32 {t3}, 4, {t3}\nv_lshl_add_u32 {vx[0]}, {t0}, 11, {t3}\nv_xor_b32 {vx[1]}, 64, {vx[0]}")
        A(f"v_add_u32 {vx[1]}, {15360}, {vx[1]}\nv_add_u32 {vx[2]}, {2*15360}, {vx[0]}\nv_add_u32 {vx[3]}, {2*15360}, {vx[1]}")
        A(f"v_and_b32 {t1}, 1, {t1}\nv_lshlrev_b32 {t1}, 1, {t1}\nv_xor_b32 {t3}, {t1}, {t2}\nv_lshlrev_b32 {t3}, 4, {t3}")
        A(f"v_mul_u32_u24 {t1}, 6144, {t0}\nv_add_u32 {vw[0]}, {t1}, {t3}\nv_xor_b32 {vw[1]}, 64, {vw[0]}")
        d = 8 * 6144 - 1024
        A(f"v_add_u32 {vw[1]}, {d}, {vw[1]}\nv_add_u32 {vw[2]}, {2*d}, {vw[0]}\nv_add_u32 {vw[3]}, {2*d}, {vw[1]}")
        self.vu = vu = V.alloc(2, 1)
        A(f"v_lshl_add_u32 {vu[0]}, {t0}, 11, {t3}\nv_xor_b32 {vu[1]}, 64, {vu[0]}\nv_add_u32 {vu[1]}, 15360, {vu[1]}")
        A(f"s_lshl_b32 {st0}, {self.srb}, 2\ns_add_u32 {st0}, {st0}, {self.sw}\ns_lshl_b32 {self.skx}, {st0}, 16")
        A(f"s_lshr_b32 {st0}, {self.sw}, 1\ns_add_u32 {st0}, {st0}, 1\ns_lshl_b32 {st0}, {st0}, 11\ns_lshl_b32 {st1}, {self.shp}, 7\ns_add_u32 {st0}, {st0}, {st1}")
        A(f"s_and_b32 {st1}, {self.sw}, 1\ns_mul_i32 {st1}, {st1}, {32*6144}\ns_add_u32 {self.swk}, {st0}, {st1}\ns_lshl_b32 {self.swl}, {self.sw}, 12")
        for r, n in ((self.rx, 4 << 20), (self.rw, 6 << 20), (self.rwo, 2 << 20), (self.ru, 4 << 20), (self.rout, 8 << 20), (self.rws, WS_SIZE)):
            A(f"s_mov_b32 {r[2]}, {n}\ns_mov_b32 {r[3]}, 0x20000")
        A(f"s_mov_b32 {self.sL[0]}, {LOG2E}\ns_mov_b32 {self.sL[1]}, {LOG2E}")
        A(f"s_getpc_b64 {self.ptab}\nL_pc:")
        A("s_waitcnt lgkmcnt(0)")
        self.prm = prm = V.alloc(6, 1)
        A(f"s_lshl_b32 {st0}, {self.shp}, 4\ns_add_u32 {st0}, {st0}, {self.srb}\ns_lshl_b32 {st0}, {st0}, 2\ns_add_u32 {st0}, {st0}, {self.sw}")
        A(f"s_lshl_b32 {st1}, {st0}, 8\nv_lshl_add_u32 {t0}, {lane}, 2, {st1}\ns_lshl_b32 {st1}, {st0}, 1\nv_mov_b32 {t1}, {st1}")
        A(f"global_load_ushort {prm[4]}, {t1}, {self.pp[8:10]}")
        for k in range(4): A(f"global_load_dword {prm[k]}, {t0}, {self.pp[2*k:2*k+2]}")
        A(f"global_load_ushort {prm[5]}, {t1}, {self.pp[10:12]}")
        if o['codepf']:
            A(f"s_lshr_b32 {st0}, s2, 3\ns_lshl_b32 {st0}, {st0}, 2\ns_add_u32 {st0}, {st0}, {self.sw}\ns_mul_i32 {st0}, {st0}, 512")
            A(f"v_bfe_u32 {t2}, {lane}, 0, 2\nv_lshl_add_u32 {t2}, {t2}, 7, {st0}\nv_min_u32 {t2}, L_codeend-L_pc-4, {t2}")
            A(f"global_load_dword {t3}, {t2}, {self.ptab}")
        A(self.issue_kv(0))
        A(f"s_lshl_b32 {st0}, {self.shp}, 7\ns_add_u32 {st0}, {st0}, {self.skx}\ns_add_u32 m0, {self.swl}, {L_UTILE}\ns_add_u32 {st1}, {st0}, {2*15360}")
        for i in range(4):
            A(f"buffer_load_dwordx4 {vu[i&1]}, {self.ru}, {st0 if i < 2 else st1} offen offset:{1024*i} lds", tag="ut")
        A(self.issue_kv(1)); A(self.issue_kv(2))
        A(f"s_add_u32 {self.ptab[0]}, {self.ptab[0]}, L_tab-L_pc\ns_addc_u32 {self.ptab[1]}, {self.ptab[1]}, 0")
        V.release(vu)

    def kb(self, s, dst):
        w = self.o['win']
        x = mk(f"s_add_u32 {dst}, {self.srot}, {s & (w-1)}\ns_and_b32 {dst}, {dst}, {w-1}")
        if s & ~(w - 1): x += mk(f"s_or_b32 {dst}, {dst}, {s & ~(w-1)}")
        return x

    def issue_kv(self, s):
        slot = (s % 3) * SLOT; st2 = self.st2; k = self.skw
        x = self.kb(s, st2)
        x += mk(f"s_lshl_b32 {k}, {st2}, 7\ns_add_u32 {k}, {k}, {self.skx}\ns_add_u32 m0, {self.swl}, {slot}")
        for i in range(4): x += mk(f"buffer_load_dwordx4 {self.vx[i]}, {self.rx}, {k} offen offset:{1024*i} lds", tag=f"st{s}")
        x += mk(f"s_mul_i32 {k}, {st2}, {64*6144}\ns_add_u32 {k}, {k}, {self.swk}\ns_add_u32 m0, {self.swl}, {slot + 16384}")
        for i in range(4): x += mk(f"buffer_load_dwordx4 {self.vw[i]}, {self.rw}, {k} offen offset:{1024*i} lds", tag=f"st{s}")
        return x

    QSLOT = [3, 1, 2, 0]

    def issue_q(self, j):
        st2, k, w = self.st2, self.skw, self.o['win']
        x = mk(f"s_add_u32 {k}, {self.sw}, {4*j}\ns_add_u32 {st2}, {self.srot}, {k}\ns_and_b32 {st2}, {st2}, {w-1}\ns_andn2_b32 {k}, {k}, {w-1}\ns_or_b32 {st2}, {st2}, {k}")
        x += mk(f"s_mul_i32 {k}, {st2}, {64*6144}\ns_lshl_b32 {st2}, {self.shp}, 7\ns_add_u32 {k}, {k}, {st2}")
        x += mk(f"s_lshl_b32 {st2}, {self.swl}, 1\ns_add_u32 m0, {st2}, {self.QSLOT[j]*SLOT}")
        for i in range(4): x += mk(f"buffer_load_dwordx4 {self.vw[i]}, {self.rw}, {k} offen offset:{1024*i} lds", tag=f"q{j}")
        x += mk(f"s_add_u32 {k}, {k}, {32*6144}\ns_add_u32 m0, m0, 4096")
        for i in range(4): x += mk(f"buffer_load_dwordx4 {self.vw[i]}, {self.rw}, {k} offen offset:{1024*i} lds", tag=f"q{j}")
        return x

    def issue_wo(self, slot):
        st2, k = self.st2, self.skw
        x = mk(f"s_lshl_b32 {k}, {self.sw}, 17\ns_lshl_b32 {st2}, {self.scb2}, 7\ns_add_u32 {k}, {k}, {st2}\ns_add_u32 {k}, {k}, {slot*256*2048}")
        x += mk(f"s_lshl_b32 {st2}, {self.swl}, 1\ns_add_u32 m0, {st2}, {slot*SLOT}")
        for i in range(4): x += mk(f"buffer_load_dwordx4 {self.vo[i]}, {self.rwo}, {k} offen offset:{1024*i} lds", tag="wo")
        x += mk(f"s_add_u32 {k}, {k}, {32*2048}\ns_add_u32 m0, m0, 4096")
        for i in range(4): x += mk(f"buffer_load_dwordx4 {self.vo[i]}, {self.rwo}, {k} offen offset:{1024*i} lds", tag="wo")
        return x

    def clears(self):
        A, V = self.A, self.V
        st0, st1 = self.st0, self.st1; lane = self.lane
        ones = V.alloc(4, 2); a = V.alloc(); b = V.alloc()
        for k in range(4): A(f"v_mov_b32 {ones[k]}, -1")
        A(f"s_lshl_b32 {st0}, {self.shp}, 4\ns_add_u32 {st0}, {st0}, {self.srb}")
        A(f"s_lshl_b32 {st1}, {st0}, 13\ns_add_u32 {st1}, {st1}, {WS_P1}\nv_lshlrev_b32 {a}, 4, v0")
        A(f"buffer_store_dwordx4 {ones}, {a}, {self.rws}, {st1} offen sc1", tag="clr")
        A(f"s_add_u32 {st1}, {st1}, 4096")
        A(f"buffer_store_dwordx4 {ones}, {a}, {self.rws}, {st1} offen sc1", tag="clr")
        A(f"s_lshl_b32 {st1}, {st0}, 9\ns_add_u32 {st1}, {st1}, {WS_P2}\nv_lshl_add_u32 {a}, {lane}, 2, {st1}\ns_lshl_b32 {st1}, {self.sw}, 7\nv_add_u32 {a}, {st1}, {a}")
        A(f"s_lshl_b32 {st1}, {st0}, 2\ns_add_u32 {st1}, {st1}, {self.sw}\ns_lshl_b32 {st1}, {st1}, 6\ns_add_u32 {st1}, {st1}, {WS_P1Z - 128}\nv_lshl_add_u32 {b}, {lane}, 2, {st1}")
        A(f"v_cmp_gt_u32 vcc, 32, {lane}\nv_cndmask_b32 {a}, {b}, {a}, vcc")
        A(self.p2z_addr(st1))
        A(f"s_lshl_b32 {st0}, {self.sw}, 2\ns_add_u32 {st1}, {st1}, {st0}\nv_mov_b32 {b}, {st1}\nv_cmp_gt_u32 vcc, 48, {lane}\nv_cndmask_b32 {a}, {b}, {a}, vcc")
        A(self.flag_addr(st1))
        A(f"v_mov_b32 {b}, {st1}\nv_cmp_gt_u32 vcc, 49, {lane}\nv_cndmask_b32 {a}, {b}, {a}, vcc")
        A(f"buffer_store_dword {ones[0]}, {a}, {self.rws}, 0 offen sc1", tag="clr")
        V.release(ones, a, b)

    def p2z_addr(self, d):
        s2 = self.st2
        return mk(f"s_lshl_b32 {d}, {self.shp}, 2\ns_lshr_b32 {s2}, {self.srb}, 2\ns_add_u32 {d}, {d}, {s2}\ns_lshl_b32 {d}, {d}, 3\n"
                  f"s_and_b32 {s2}, {self.srb}, 3\ns_add_u32 {d}, {d}, {s2}\ns_lshl_b32 {d}, {d}, 4\ns_add_u32 {d}, {d}, {WS_P2Z}")

    def flag_addr(self, d):
        return mk(f"s_lshl_b32 {d}, {self.srb}, 2\ns_add_u32 {d}, {d}, {self.sw}\ns_lshl_b32 {d}, {d}, 4\ns_add_u32 {d}, {d}, {self.shp}\n"
                  f"s_lshl_b32 {d}, {d}, 2\ns_add_u32 {d}, {d}, {WS_FL}")

    def tr_addr(self, dst, mode):
        t0, t1, t2, _ = self.t; lane = self.lane
        x = f"v_lshrrev_b32 {t0}, 4, {lane}\nv_bfe_u32 {t1}, {lane}, 2, 2\nv_lshl_add_u32 {t2}, {t0}, {3 if mode == 'w' else 2}, {t1}\nv_lshlrev_b32 {t2}, 7, {t2}\n"
        x += f"v_bfe_u32 {t0}, {lane}, 3, 2\nv_lshl_add_u32 {t2}, {t0}, 5, {t2}\nv_and_b32 {t0}, 3, {lane}\nv_lshl_add_u32 {dst}, {t0}, 3, {t2}"
        return mk(x)

    def utrans(self):
        A, V = self.A, self.V
        st0 = self.st0; lane = self.lane
        a = V.alloc(); b = V.alloc(); ad = V.alloc(); d = [V.alloc(4, 2) for _ in range(4)]
        A(self.tr_addr(a, 'w'))
        A(f"s_add_u32 {st0}, {self.swl}, {L_UTILE}\nv_add_u32 {a}, {st0}, {a}")
        A(f"v_and_b32 {ad}, 15, {lane}\nv_lshlrev_b32 {ad}, 12, {ad}\nv_lshrrev_b32 {b}, 4, {lane}\nv_lshl_add_u32 {ad}, {b}, 4, {ad}")
        A(f"s_lshl_b32 {st0}, {self.shp}, 18\ns_lshr_b32 {self.st1}, {self.skx}, 10\ns_add_u32 {st0}, {st0}, {self.st1}")
        A("s_waitcnt vmtag(ut)")
        for ct in range(4):
            A(f"v_xor_b32 {b}, {32*ct}, {a}")
            for h in range(2): A(f"ds_read_b64_tr_b16 {d[ct][2*h:2*h+2]}, {b} offset:{512*h}")
        for ct in range(4):
            A(f"buffer_store_dwordx4 {d[ct]}, {ad}, {self.rws}, {st0} offen sc1", tag="clr")
            if ct < 3: A(f"s_add_u32 {st0}, {st0}, {16*4096}")
        V.release(a, b, ad, d)

    def cmul(self, d, a, b):
        self.A(f"v_pk_mul_f32 {d}, {a}, {b} op_sel:[0,0] op_sel_hi:[0,1]")
        self.A(f"v_pk_fma_f32 {d}, {a}, {b}, {d} op_sel:[1,1,0] op_sel_hi:[1,0,1] neg_lo:[1,0,0]")

    def exp_bf16(self, d, x, t):
        A = self.A
        lo = f32(math.log2(math.e) - struct.unpack('<f', struct.pack('<I', LOG2E))[0])
        A(f"v_mul_f32 {t[0]}, {self.sL[0]}, {x}\nv_fma_f32 {t[1]}, {x}, {self.sL[0]}, -{t[0]}\nv_fmamk_f32 {t[1]}, {x}, {hex(lo)}, {t[1]}")
        A(f"v_exp_f32 {t[0]}, {t[0]}\nv_mul_f32 {t[1]}, 0x3f317218, {t[1]}\nv_fma_f32 {t[0]}, {t[0]}, {t[1]}, {t[0]}")
        A(f"v_cvt_pk_bf16_f32 {d}, {t[0]}, {t[0]}\nv_and_b32 {d}, 0xffff0000, {d}")

    def kgen(self):
        A, V = self.A, self.V
        lane, prm, st0 = self.lane, self.prm, self.st0
        mark = set(V.free)
        wa = V.alloc(); ra = V.alloc(); ka = V.alloc()
        z4 = V.alloc(4, 2)
        A(f"s_mul_i32 {st0}, {self.sw}, {SCR_W}\ns_add_u32 {st0}, {st0}, {L_SCR}\nv_lshl_add_u32 {wa}, {lane}, 3, {st0}")
        jc = V.alloc(); g = V.alloc()
        A(f"v_and_b32 {jc}, 15, {lane}\nv_lshrrev_b32 {g}, 4, {lane}\nv_mul_u32_u24 {ra}, 544, {jc}\nv_lshl_add_u32 {ra}, {g}, 4, {ra}\nv_add_u32 {ra}, {st0}, {ra}")
        self.ska = ska = self.S.alloc()
        A(f"s_mul_i32 {ska}, {self.sw}, {KA_W}\ns_add_u32 {ska}, {ska}, {L_KA}\nv_lshl_add_u32 {ka}, {lane}, 4, {ska}")
        for k in range(4): A(f"v_mov_b32 {z4[k]}, 0")
        for off in (0, 1024, 2048, KA_W - 1024): A(f"ds_write_b128 {ka}, {z4} offset:{off}", mw=['ka'])
        dt = V.alloc(); dsk = V.alloc(); tt = V.alloc(2, 1)
        A(f"v_lshlrev_b32 {dt}, 16, {prm[4]}\nv_lshlrev_b32 {dsk}, 16, {prm[5]}")
        self.exp_bf16(dt, dt, tt)
        E = {}
        C = []
        for m in range(2):
            ex = (lambda d, s: f"v_lshlrev_b32 {d}, 16, {s}") if m == 0 else (lambda d, s: f"v_and_b32 {d}, 0xffff0000, {s}")
            rho = V.alloc(); phi = V.alloc(); t2 = V.alloc(2, 1); c = V.alloc(2, 2)
            A(ex(rho, prm[0])); self.exp_bf16(rho, rho, t2)
            A(f"v_mul_f32 {rho}, {rho}, {dt}\nv_mul_f32 {rho}, {hex(LOG2E | 0x80000000)}, {rho}")
            A(ex(phi, prm[1])); A(f"v_mul_f32 {phi}, {phi}, {dt}\nv_mul_f32 {phi}, 0.15915494, {phi}")
            A(ex(c[0], prm[2])); A(ex(c[1], prm[3]))
            A(f"v_mul_f32_e64 {c[0]}, {c[0]}, {dt}\nv_mul_f32_e64 {c[1]}, {c[1]}, {dt}\nv_pk_add_f32 {c}, {c}, {c}")
            C.append(c)
            for p in (1, 8, 128):
                e = V.alloc(2, 2); mg = V.alloc(); th = V.alloc()
                if p == 1: A(f"v_exp_f32 {mg}, {rho}\nv_fract_f32 {th}, {phi}")
                else: A(f"v_mul_f32 {mg}, {hex(f32(p))}, {rho}\nv_exp_f32 {mg}, {mg}\nv_mul_f32 {th}, {hex(f32(p))}, {phi}\nv_fract_f32 {th}, {th}")
                A(f"v_cos_f32 {e[0]}, {th}\nv_sin_f32 {e[1]}, {th}\nv_mul_f32 {e[0]}, {e[0]}, {mg}\nv_mul_f32 {e[1]}, {e[1]}, {mg}")
                E[(m, p)] = e
        pk = [V.alloc(2, 2) for _ in range(4)]; npk = [0]

        def put(row, vals, neg=False):
            d = pk[npk[0] % len(pk)]; npk[0] += 1
            for m in range(2):
                if vals is None: A(f"v_mov_b32 {d[m]}, 0x3f80")
                else: A(f"v_cvt_pk_bf16_f32 {d[m]}, {vals[m][0]}, {'-' if neg else ''}{vals[m][1]}")
            A(f"ds_write_b64 {wa}, {d} offset:{row*544}", mw=[f'scr{row}'])

        def mul(p, q, r, keep=True):
            for m in range(2):
                d = V.alloc(2, 2); self.cmul(d, E[(m, q)], E[(m, r)]); E[(m, p)] = d

        def drop(*ps):
            for p in ps:
                for m in range(2): V.release(E.pop((m, p)))

        def frags(dst):
            for ks in range(8): A(f"ds_read_b128 {dst[ks]}, {ra} offset:{64*ks}", mr=[f'scr{r}' for r in range(16)])
        O = [Rg('a', 4 * k, 4) for k in range(8)]
        B = [[Rg('a', 32 + 32 * b + 4 * k, 4) for k in range(8)] for b in range(3)]
        mul(16, 8, 8)
        cur = [C, [V.alloc(2, 2) for m in range(2)]]
        nxt = [[V.alloc(2, 2) for m in range(2)] for _ in range(2)]
        for m in range(2): self.cmul(cur[1][m], C[m], E[(m, 8)])
        for j in range(16):
            ch = j & 1
            put(j, cur[ch], neg=True)
            if j + 2 < 16:
                for m in range(2): self.cmul(nxt[ch][m], cur[ch][m], E[(m, 16)])
                cur[ch], nxt[ch] = nxt[ch], cur[ch]
        frags(O)
        V.release(cur, nxt); drop(16)
        g2 = lambda p: [E[(0, p)], E[(1, p)]]
        mul(2, 1, 1); mul(3, 2, 1); mul(4, 2, 2); mul(5, 4, 1); mul(6, 4, 2); mul(7, 4, 3)
        put(0, None)
        for r in range(1, 8): put(r, g2(r))
        put(8, g2(128))
        for r in range(1, 8):
            mul(128 + r, 128, r); put(8 + r, g2(128 + r))
            if r > 1: drop(128 + r - 1)
        frags(B[0]); drop(135, 1, 3, 5, 7)
        mul(256, 128, 128); mul(384, 256, 128); mul(512, 256, 256)
        for b, base in enumerate((256, 384)):
            put(4 * b, g2(base))
            for r in range(1, 4):
                mul(base + 2 * r, base, 2 * r); put(4 * b + r, g2(base + 2 * r))
            drop(base + 2, base + 4, base + 6)
        mul(516, 512, 4); mul(520, 512, 8)
        for cc in range(4):
            for h in range(2):
                p = 516 + 4 * h + 128 * cc
                put(8 + 2 * cc + h, g2(p))
                if cc < 3: mul(p + 128, p, 128)
                drop(p)
        frags(B[1]); drop(384, 2, 4, 6)
        mul(1024, 512, 512); mul(1032, 1024, 8); mul(1160, 1032, 128)
        put(8, g2(512))
        for cc in range(8):
            p = 1032 + 128 * cc
            put(cc, g2(p))
            if cc < 6: mul(p + 256, p, 256)
            drop(p)
        frags(B[2])
        F = [V.alloc(4, 4) for _ in range(3)]
        for b in range(3):
            for ks in range(8): A(f"{MF} {F[b]}, {B[b][ks]}, {O[ks]}, {F[b] if ks else 0}")
        X, Y, Z = F
        d = V.alloc(4, 4); e = V.alloc(4, 2); a1 = V.alloc(); a2 = V.alloc(); a3 = V.alloc(); a4 = V.alloc(); tm = V.alloc()
        cv = lambda dd, x, y: A(f"v_cvt_pk_bf16_f32 {dd}, {x}, {y}")
        A(f"v_lshlrev_b32 {a1}, 4, {lane}\nv_sub_u32 {a1}, {ska}, {a1}\nv_add_u32 {a1}, 560, {a1}")
        A(f"v_lshrrev_b32 {tm}, 5, {lane}\nv_lshl_add_u32 {a2}, {tm}, 4, {jc}\nv_lshlrev_b32 {a2}, 1, {a2}\nv_bfe_u32 {tm}, {lane}, 4, 1\nv_add_u32 {a2}, {a2}, {tm}\nv_lshlrev_b32 {a2}, 3, {a2}\nv_sub_u32 {a2}, {ska}, {a2}\nv_add_u32 {a2}, 1080, {a2}")
        A(f"v_lshrrev_b32 {tm}, 1, {jc}\nv_lshl_add_u32 {a3}, {g}, 4, {tm}\nv_lshlrev_b32 {a3}, 2, {a3}\nv_sub_u32 {a3}, {ska}, {a3}\nv_and_b32 {a4}, 1, {jc}")
        A(f"v_mul_u32_u24 {a4}, {KA_G2B - KA_G2A}, {a4}\nv_add_u32 {a3}, {a3}, {a4}\nv_add_u32 {a3}, {KA_G2A + 4*71}, {a3}")
        A(f"v_lshl_add_u32 {a4}, {g}, 5, {tm}\nv_lshlrev_b32 {a4}, 1, {a4}\nv_and_b32 {tm}, 1, {jc}\nv_sub_u32 {a4}, {a4}, {tm}\nv_lshlrev_b32 {a4}, 1, {a4}\nv_sub_u32 {a4}, {ska}, {a4}\nv_add_u32 {a4}, {KA_G3 + 4*39}, {a4}")
        cv(d[0], Y[3], Y[2]); cv(d[1], Y[2], Y[2]); cv(d[2], Y[1], Y[0]); cv(d[3], Y[0], Y[0]); cv(e[0], Y[2], Y[1])
        cv(e[1], Y[0], Y[1]); cv(e[2], Y[2], Y[3])
        z0 = V.alloc(); z1 = V.alloc(); zz = V.alloc(2, 2); x = V.alloc(2, 2); x2 = V.alloc()
        cv(z0, Z[0], Z[1]); cv(z1, Z[2], Z[3]); cv(zz[0], Z[0], Z[0]); cv(zz[1], Z[0], Z[0])
        A(f"v_cmp_eq_u32 vcc, 0, {lane}\nv_cndmask_b32 {dsk}, 0, {dsk}, vcc\nv_add_f32 {X[0]}, {X[0]}, {dsk}")
        cv(x[0], X[3], X[2]); cv(x[1], X[1], X[0]); cv(x2, X[2], X[1])
        W = dict(mw=['ka'])
        A("s_mov_b32 exec_hi, 0")
        A(f"ds_write_b128 {a1}, {d} offset:{KA_B + 4}", **W)
        A(f"ds_write_b16 {a1}, {d[0]} offset:{KA_A + 2}", **W)
        A(f"ds_write2_b32 {a1}, {d[1]}, {e[0]} offset0:1 offset1:2", **W)
        A(f"ds_write_b32 {a1}, {d[3]} offset:{KA_A + 12}", **W)
        A(f"ds_write_b16 {a1}, {d[3]} offset:{KA_A + 16}", **W)
        A(f"ds_write_b16 {a4}, {z0} offset:96\nds_write_b16_d16_hi {a4}, {z0} offset:64\nds_write_b16 {a4}, {z1} offset:32\nds_write_b16_d16_hi {a4}, {z1}", **W)
        A("s_not_b64 exec, exec")
        A(f"ds_write2_b32 {a3}, {e[1]}, {e[2]} offset0:8 offset1:0", **W)
        A(f"s_mov_b32 exec_hi, 1\nv_mov_b32 {tm}, {ska}")
        A(f"ds_write_b64 {tm}, {zz} offset:{KA_A + 58}\nds_write_b64 {tm}, {zz} offset:{KA_B + 60}", **W)
        A("s_mov_b64 exec, -1")
        A(f"ds_write_b64 {a2}, {x} offset:{KA_A}", **W)
        A(f"ds_write_b16 {a2}, {x[0]} offset:{KA_B + 2}\nds_write_b32 {a2}, {x2} offset:{KA_B + 4}\nds_write_b16_d16_hi {a2}, {x[1]} offset:{KA_B + 8}", **W)
        self.kgF = F
        V.free = mark | {self.prm.b + k for k in range(6)}

    @staticmethod
    def xk(s, t, ks):
        return Rg('a', s * 16 + t * 8 + ks * 4, 4)

    def weave(self, M, R, D, dper=4):
        A = self.A
        R = list(R); D = list(D)
        for k, m in enumerate(M):
            A(m)
            if R: A(R.pop(0))
            if D:
                if D[0].kind != 'vmem':
                    A(D.pop(0))
                    if not R and D and D[0].kind != 'vmem': A(D.pop(0))
                elif k % dper == dper - 1 or len(D) > len(M) - k - 1: A(D.pop(0))
        A(R); A(D)

    def kv_gemm(self):
        A, V = self.A, self.V
        t0, t1, t2, t3 = self.t; lane = self.lane; st0, st1 = self.st0, self.st1
        ax = V.alloc(8, 1); aw = V.alloc(4, 1)
        A(f"v_and_b32 {t0}, 15, {lane}\nv_lshrrev_b32 {t1}, 1, {t0}\nv_lshrrev_b32 {t2}, 4, {lane}\nv_xor_b32 {t1}, {t1}, {t2}")
        A(f"v_lshlrev_b32 {t0}, 7, {t0}\nv_lshl_add_u32 {t0}, {t1}, 4, {t0}\nv_add_u32 {ax[0]}, {self.swl}, {t0}")
        A(f"v_xor_b32 {ax[1]}, 64, {ax[0]}\nv_xor_b32 {ax[2]}, 4096, {ax[0]}\nv_xor_b32 {ax[3]}, 4096, {ax[1]}")
        for k in range(4): A(f"v_add_u32 {ax[4+k]}, 65536, {ax[k]}")
        self.atw = V.alloc()
        A(self.tr_addr(self.atw, 'w'))
        A(f"s_and_b32 {st0}, {self.sw}, 1\ns_lshl_b32 {st0}, {st0}, 6\ns_add_u32 {st0}, {st0}, 16384\nv_xor_b32 {aw[0]}, {st0}, {self.atw}\nv_xor_b32 {aw[1]}, 32, {aw[0]}")
        for k in range(2): A(f"v_add_u32 {aw[2+k]}, 65536, {aw[k]}")
        self.acck = acck = [[V.alloc(4, 4) for t in range(4)] for nt in range(2)]
        self.accv = accv = [[V.alloc(4, 4) for t in range(4)] for nt in range(2)]
        self.wphi = [[V.alloc(4, 4) for ft in range(2)] for h in range(2)]
        xo = [[[V.alloc(4, 4) for ks in range(2)] for t in range(2)] for b in range(2)]
        wf = [[[[V.alloc(4, 4) for ks in range(2)] for nt in range(2)] for p in range(2)] for b in range(2)]
        xfrag = lambda s, t, ks: self.xk(s, t, ks) if t < 2 else xo[s & 1][t - 2][ks]

        def rd(s):
            slot = (s % 3) * SLOT; hi = int(slot >= 65536); off = slot - 65536 * hi
            o = []
            rx = lambda t, ks: o.append(I(f"ds_read_b128 {xfrag(s,t,ks)}, {ax[4*hi + (t>>1)*2 + ks]} offset:{off + (t&1)*2048}"))

            def rw(p, nt, ks):
                for h in range(2): o.append(I(f"ds_read_b64_tr_b16 {wf[s&1][p][nt][ks][2*h:2*h+2]}, {aw[2*hi+nt]} offset:{off + p*8192 + ks*4096 + h*512}"))
            rw(0, 0, 0); rw(0, 0, 1)
            for t in range(4): rx(t, 0); rx(t, 1)
            rw(0, 1, 0); rw(0, 1, 1); rw(1, 0, 0); rw(1, 0, 1); rw(1, 1, 0); rw(1, 1, 1)
            return o

        def mm(s):
            o = []
            for p in range(2):
                for nt in range(2):
                    for t in range(4):
                        for ks in range(2):
                            acc = (acck, accv)[p][nt][t]; w = wf[s & 1][p][nt][ks]; x = xfrag(s, t, ks)
                            cc = '0' if (s == 0 and ks == 0) else acc
                            o.append(I(f"{MF} {acc}, {w}, {x}, {cc}" if p == 0 else f"{MF} {acc}, {x}, {w}, {cc}"))
            return o
        A("s_waitcnt vmtag(st0) lgkmcnt(0)\ns_barrier")
        self.stamp()
        A(rd(0))
        self.vcnt = vcnt = V.alloc()
        for s in range(16):
            if s < 15: A(f"s_waitcnt vmtag(st{s+1}) lgkmcnt(0)\ns_barrier")
            else: A("s_waitcnt lgkmcnt(0)\ns_barrier")
            R = rd(s + 1) if s < 15 else []
            D = self.issue_kv(s + 3) if s + 3 < 16 else []
            if s == 3:
                A(f"s_cmp_eq_u32 {self.sw}, 0\ns_cbranch_scc0 L_noci\ns_mov_b64 exec, 1\nv_mov_b32 {t0}, 0\nv_mov_b32 {t1}, 1")
                A(f"global_atomic_add {t0}, {t1}, {self.pdbg} sc1", nocount=True)
                A("s_mov_b64 exec, -1\nL_noci:")
            if s == 5:
                D = D + mk(f"s_lshl_b32 {st0}, {self.shp}, 12\nv_lshl_add_u32 {t0}, v0, 4, {st0}\ns_lshr_b32 {st1}, {self.swl}, 2\ns_add_u32 m0, {st1}, {L_UTILE}") + \
                    mk(f"global_load_lds_dwordx4 {t0}, {self.pphi}", tag="st8")
            if s == 9:
                R = R + mk(f"v_lshrrev_b32 {t0}, 2, {lane}\nv_lshlrev_b32 {t0}, 6, {t0}\nv_and_b32 {t1}, 3, {lane}\nv_lshl_add_u32 {t0}, {t1}, 3, {t0}") + \
                    mk(f"s_and_b32 {st0}, {self.sw}, 1\ns_lshl_b32 {st0}, {st0}, 11\ns_add_u32 {st1}, {st0}, {L_UTILE}\nv_add_u32 {t1}, {st1}, {t0}")
            if s == 10:
                R = R + mk(f"s_xor_b32 {st0}, {st0}, 2048\ns_add_u32 {st1}, {st0}, {L_UTILE}\nv_add_u32 {t2}, {st1}, {t0}")
                R += [I(f"ds_read_b64_tr_b16 {self.wphi[0][ft][2*h:2*h+2]}, {t1} offset:{32*ft + 1024*h}") for ft in range(2) for h in range(2)]
            if s == 11:
                R = R + [I(f"ds_read_b64_tr_b16 {self.wphi[1][ft][2*h:2*h+2]}, {t2} offset:{32*ft + 1024*h}") for ft in range(2) for h in range(2)]
            if s == 13: D = self.issue_q(0)
            if s == 14: D = self.issue_q(1) + mk(f"v_mov_b32 {t0}, 0\nglobal_load_dword {vcnt}, {t0}, {self.pdbg} sc1")
            if s == 15: D = self.issue_q(2)
            self.weave(mm(s), R, D, dper=3)
        V.release(ax, aw, xo, wf, self.vx)

    def xreduce(self, m, op, mid):
        A = self.A
        A(f"v_permlane16_swap_b32 {m[0]}, {m[1]}\n{op} {m[0]}, {m[0]}, {m[1]}")
        A(f"v_permlane16_swap_b32 {m[2]}, {m[3]}\n{op} {m[2]}, {m[2]}, {m[3]}")
        A(f"v_permlane32_swap_b32 {m[0]}, {m[2]}\n{op} {m[0]}, {m[0]}, {m[2]}")
        mid(m[0])
        A(f"v_mov_b32 {m[2]}, {m[0]}\nv_permlane32_swap_b32 {m[0]}, {m[2]}")
        A(f"v_mov_b32 {m[1]}, {m[0]}\nv_permlane16_swap_b32 {m[0]}, {m[1]}")
        A(f"v_mov_b32 {m[3]}, {m[2]}\nv_permlane16_swap_b32 {m[2]}, {m[3]}")

    def bc(self, r):
        return Rg('v', r.b & ~1, 2), r.b & 1

    def dual_exp(self, P):
        A, V = self.A, self.V
        mx = V.alloc(4, 2); mn = V.alloc(4, 2)
        for u in range(4):
            a, b = P[u]
            for m, o3, o2 in ((mx, 'v_max3_f32', 'v_max_f32'), (mn, 'v_min3_f32', 'v_min_f32')):
                A(f"{o3} {m[u]}, {a[0]}, {a[1]}, {a[2]}\n{o3} {m[u]}, {m[u]}, {a[3]}, {b[0]}\n{o3} {m[u]}, {m[u]}, {b[1]}, {b[2]}\n{o2} {m[u]}, {m[u]}, {b[3]}")
        for m, op in ((mx, 'v_max_f32'), (mn, 'v_min_f32')):
            self.xreduce([m[k] for k in range(4)], op, lambda r: A(f"v_mul_f32 {r}, {self.sL[0]}, {r}"))
        N = [(V.alloc(4, 2), V.alloc(4, 2)) for u in range(4)]
        for u in range(4):
            for h in range(2):
                for q in range(2):
                    src = P[u][h][2*q:2*q+2]; dn = N[u][h][2*q:2*q+2]
                    pr, se = self.bc(mn[u])
                    A(f"v_pk_fma_f32 {dn}, {src}, {self.sL}, {pr} op_sel:[0,0,{se}] op_sel_hi:[1,1,{se}] neg_lo:[1,0,0] neg_hi:[1,0,0]")
                    pr, se = self.bc(mx[u])
                    A(f"v_pk_fma_f32 {src}, {src}, {self.sL}, {pr} op_sel:[0,0,{se}] op_sel_hi:[1,1,{se}] neg_lo:[0,0,1] neg_hi:[0,0,1]")
                    for z in range(2): A(f"v_exp_f32 {src[z]}, {src[z]}\nv_exp_f32 {dn[z]}, {dn[z]}")
        V.release(mx, mn)
        return [P, N]

    def pack2(self, d, a, b):
        self.A(f"v_cvt_pk_bf16_f32 {d[0]}, {a[0]}, {a[1]}\nv_cvt_pk_bf16_f32 {d[1]}, {a[2]}, {a[3]}\n"
               f"v_cvt_pk_bf16_f32 {d[2]}, {b[0]}, {b[1]}\nv_cvt_pk_bf16_f32 {d[3]}, {b[2]}, {b[3]}")

    def spin(self, name, reload, check):
        A = self.A
        check()
        A(f"s_cbranch_vccnz L_{name}_retry\nL_{name}_ok:")
        save = self.c; self.c = self.tailc
        A(f"L_{name}_retry:\ns_mov_b32 {self.sspin}, 0\nL_{name}_loop:\ns_nop 7\ns_nop 7")
        reload()
        A("s_waitcnt vmcnt(0)")
        check()
        A(f"s_cbranch_vccz L_{name}_done\ns_add_u32 {self.sspin}, {self.sspin}, 1\ns_cmp_lt_u32 {self.sspin}, 0x80000\ns_cbranch_scc1 L_{name}_loop")
        A(f"L_{name}_done:\ns_nop 7\ns_branch L_{name}_ok")
        self.c = save

    def kv_epi(self):
        A, V = self.A, self.V
        t0, t1, t2, t3 = self.t; lane = self.lane; st0, st1, st2 = self.st0, self.st1, self.st2
        acck, accv = self.acck, self.accv
        vf = [[V.alloc(4, 4) for et in range(2)] for P in range(2)]
        av = V.alloc(); ap = V.alloc(); ar = V.alloc(2, 1)

        def part1():
            A(f"s_add_u32 {st0}, {self.swl}, {L_UP}\nv_lshl_add_u32 {av}, {lane}, 4, {st0}")
            for P in range(2):
                for et in range(2):
                    self.pack2(vf[P][et], accv[et][2*P], accv[et][2*P+1])
                    A(f"ds_write_b128 {av}, {vf[P][et]} offset:{(2*P+et)*1024}", mw=['vx'])
            Pk = []
            for t in range(4):
                kf = accv[0][t]; self.pack2(kf, acck[0][t], acck[1][t])
                for ft in range(2): A(f"{MF} {acck[ft][t]}, {self.wphi[0][ft]}, {kf}, 0")
                Pk.append((acck[0][t], acck[1][t]))
            E = self.dual_exp(Pk)
            A(f"v_and_b32 {t0}, 15, {lane}\nv_bfe_u32 {t1}, {lane}, 1, 2\nv_lshrrev_b32 {t2}, 4, {lane}\nv_xor_b32 {t1}, {t1}, {t2}\nv_lshlrev_b32 {t0}, 6, {t0}")
            A(f"v_lshl_add_u32 {t0}, {t1}, 4, {t0}\ns_lshl_b32 {st0}, {self.swl}, 1\nv_add_u32 {ap}, {st0}, {t0}")
            A(f"v_lshrrev_b32 {t0}, 2, {lane}\nv_bfe_u32 {t1}, {lane}, 3, 2\nv_and_b32 {t2}, 3, {lane}\nv_xor_b32 {t1}, {t1}, {t2}\nv_lshlrev_b32 {t0}, 6, {t0}")
            A(f"v_lshl_add_u32 {t0}, {t1}, 4, {t0}\ns_lshr_b32 {st1}, {self.sw}, 1\ns_lshl_b32 {st1}, {st1}, 12\ns_add_u32 {st1}, {st1}, {st0}")
            A(f"v_add_u32 {ar[0]}, {st1}, {t0}\nv_xor_b32 {ar[1]}, 16384, {ar[0]}")
            for sg in range(2):
                sm = V.alloc(4, 2); tp = [V.alloc(2, 2) for _ in range(4)]
                for u in range(4):
                    a, b = E[sg][u]
                    A(f"v_pk_add_f32 {tp[u]}, {a[0:2]}, {a[2:4]}\nv_pk_add_f32 {tp[u]}, {tp[u]}, {b[0:2]}\nv_pk_add_f32 {tp[u]}, {tp[u]}, {b[2:4]}\nv_add_f32 {sm[u]}, {tp[u][0]}, {tp[u][1]}")
                self.xreduce([sm[k] for k in range(4)], 'v_add_f32', lambda r: A(f"v_rcp_f32 {r}, {r}"))
                for u in range(4):
                    a, b = E[sg][u]; pr, se = self.bc(sm[u])
                    for x in (a[0:2], a[2:4], b[0:2], b[2:4]): A(f"v_pk_mul_f32 {x}, {x}, {pr} op_sel:[0,{se}] op_sel_hi:[1,{se}]")
                    d = accv[sg][u]; self.pack2(d, a, b)
                    A(f"ds_write_b128 {ap}, {d} offset:{sg*4096 + u*1024}", mw=['phi'])
                self.tmp_rel += [sm, tp]
            self.tmp_rel += [E[1]]
        self.tmp_rel = []
        A(self.blk(part1)); V.release(self.tmp_rel)
        A("s_waitcnt lgkmcnt(0)\ns_barrier")
        kvp = [V.alloc(4, 4) for et in range(2)]; zp = V.alloc(4, 4); ad = V.alloc(); az = V.alloc()

        def part2():
            pv = [[accv[P][et] for et in range(2)] for P in range(2)]
            A(f"v_xor_b32 {av}, 8192, {av}")
            ones = accv[0][2]
            for k in range(4): A(f"v_mov_b32 {ones[k]}, 0x3f803f80")
            pf = [[V.alloc(4, 4) for ft in range(2)] for ks in range(4)]
            for ks in range(4):
                for ft in range(2):
                    for h in range(2): A(f"ds_read_b64_tr_b16 {pf[ks][ft][2*h:2*h+2]}, {ar[ks>>1]} offset:{(ks&1)*2048 + h*1024 + 8*ft}")
                if ks < 2:
                    for et in range(2): A(f"ds_read_b128 {pv[ks][et]}, {av} offset:{(2*ks+et)*1024}")
            kv = [[acck[ft][et] for et in range(3)] for ft in range(2)]
            for ks in range(4):
                for ft in range(2):
                    for et in range(3):
                        b = ones if et == 2 else (vf[ks][et] if ks < 2 else pv[ks-2][et])
                        A(f"{MF} {kv[ft][et]}, {pf[ks][ft]}, {b}, {kv[ft][et] if ks else 0}")
            for et in range(2): self.pack2(kvp[et], kv[0][et], kv[1][et])
            self.pack2(zp, kv[0][2], kv[1][2])
            A(f"v_lshrrev_b32 {t0}, 5, {lane}\nv_and_b32 {t1}, 31, {lane}\nv_lshlrev_b32 {t1}, 4, {t1}\nv_lshl_add_u32 {ad}, {t0}, 13, {t1}")
            A(f"v_lshrrev_b32 {t2}, 4, {lane}\nv_lshlrev_b32 {az}, 8, {t2}")
            A(f"s_lshl_b32 {st0}, {self.shp}, 2\ns_add_u32 {st0}, {st0}, {self.sw}\ns_lshl_b32 {st0}, {st0}, 6\ns_add_u32 {st0}, {st0}, {self.srb}")
            A(f"s_lshl_b32 {st1}, {st0}, 4\ns_add_u32 {st1}, {st1}, {WS_P1Z}\ns_lshl_b32 {st0}, {st0}, 9\ns_add_u32 {st0}, {st0}, {WS_P1}\ns_add_u32 {st2}, {st0}, 16384")
            self.tmp_rel = [pf]
        A(self.blk(part2)); V.release(self.tmp_rel)
        self.spin("ci", lambda: A(f"v_mov_b32 {t0}, 0\nglobal_load_dword {self.vcnt}, {t0}, {self.pdbg} sc1"),
                  lambda: A(f"v_cmp_gt_u32 vcc, 256, {self.vcnt}"))
        A(f"buffer_store_dwordx4 {kvp[0]}, {ad}, {self.rws}, {st0} offen sc1\nbuffer_store_dwordx4 {kvp[1]}, {ad}, {self.rws}, {st2} offen sc1")
        A(f"s_mov_b32 exec_lo, 0x10001\ns_mov_b32 exec_hi, 0x10001\nbuffer_store_dwordx4 {zp}, {az}, {self.rws}, {st1} offen sc1\ns_mov_b64 exec, -1")
        if self.o['dump'] == 'kvp': self.dump(kvp + [zp])
        V.release(vf, av, ap, ar, kvp, zp, ad, az, acck, accv, self.vcnt)

    def q_gemm(self):
        A, V = self.A, self.V
        t0, t1, t2, t3 = self.t; lane = self.lane; st0, st1, st2 = self.st0, self.st1, self.st2
        aq = V.alloc(8, 1)
        A(f"s_and_b32 {st0}, {self.sw}, 1\ns_lshl_b32 {st0}, {st0}, 6\nv_xor_b32 {aq[0]}, {st0}, {self.atw}")
        for k in range(1, 4): A(f"v_xor_b32 {aq[k]}, {32*k}, {aq[0]}")
        for k in range(4): A(f"v_add_u32 {aq[4+k]}, 65536, {aq[k]}")
        self.accq = acc = [[V.alloc(4, 4) for t in range(2)] for nt in range(4)]
        wf = [[[V.alloc(4, 4) for ks in range(2)] for nt in range(4)] for b in range(2)]
        self.vo = vo = V.alloc(4, 1)
        A(f"v_lshrrev_b32 {t0}, 3, {lane}\nv_lshrrev_b32 {t1}, 4, {lane}\nv_lshlrev_b32 {t1}, 1, {t1}\nv_and_b32 {t2}, 7, {lane}\nv_xor_b32 {t1}, {t1}, {t2}\nv_lshlrev_b32 {t1}, 4, {t1}")
        A(f"v_lshl_add_u32 {vo[0]}, {t0}, 11, {t1}")
        for k in range(1, 4): A(f"v_add_u32 {vo[k]}, {15360*k}, {vo[0]}")

        def rd(s):
            base = self.QSLOT[s >> 2] * SLOT + (s & 3) * 8192; hi = int(base >= 65536); off = base - 65536 * hi
            return [I(f"ds_read_b64_tr_b16 {wf[s&1][nt][ks][2*h:2*h+2]}, {aq[4*hi+nt]} offset:{off + ks*4096 + h*512}")
                    for nt in range(4) for ks in range(2) for h in range(2)]

        def mm(s):
            return [I(f"{MF} {acc[nt][t]}, {wf[s&1][nt][ks]}, {self.xk(s,t,ks)}, {'0' if s == 0 and ks == 0 else acc[nt][t]}")
                    for nt in range(4) for t in range(2) for ks in range(2)]
        pl = V.alloc(8, 2); pz = V.alloc(); a1 = V.alloc(); a2 = V.alloc()
        s1 = self.S.alloc(); s1b = self.S.alloc(); s1z = self.S.alloc()

        def a1_addr():
            x = mk(f"s_lshl_b32 {st0}, {self.shp}, 4\ns_add_u32 {st0}, {st0}, {self.srb}\ns_lshl_b32 {s1z}, {st0}, 8\ns_add_u32 {s1z}, {s1z}, {WS_P1Z}")
            x += mk(f"s_lshl_b32 {s1}, {st0}, 13\ns_lshl_b32 {st1}, {self.sw}, 7\ns_add_u32 {s1}, {s1}, {st1}\ns_add_u32 {s1}, {s1}, {WS_P1}\ns_add_u32 {s1b}, {s1}, 4096")
            x += mk(f"v_lshrrev_b32 {t0}, 5, {lane}\nv_and_b32 {t1}, 31, {lane}\nv_lshlrev_b32 {t1}, 2, {t1}\nv_lshl_add_u32 {a1}, {t0}, 9, {t1}\nv_lshlrev_b32 {a2}, 2, {lane}")
            return x

        def a1_load():
            x = [I(f"buffer_load_dword {pl[i]}, {a1}, {self.rws}, {s1 if i < 4 else s1b} offen offset:{(i&3)*1024} sc1") for i in range(8)]
            return x + mk(f"buffer_load_dword {pz}, {a2}, {self.rws}, {s1z} offen sc1")

        def a1_check():
            A(f"v_max3_u32 {t0}, {pl[0]}, {pl[1]}, {pl[2]}\nv_max3_u32 {t1}, {pl[3]}, {pl[4]}, {pl[5]}\nv_max3_u32 {t0}, {t0}, {pl[6]}, {pl[7]}\nv_max3_u32 {t0}, {t0}, {t1}, {pz}")
            A(f"v_cmp_eq_u32 vcc, -1, {t0}")

        def a1_reduce():
            u = [V.alloc(2, 2) for _ in range(4)]; zz = V.alloc(2, 2); z2 = V.alloc(2, 2)
            for i in range(8):
                d = u[i] if i < 2 else u[2 + (i & 1)]
                A(f"v_lshlrev_b32 {d[0]}, 16, {pl[i]}\nv_and_b32 {d[1]}, 0xffff0000, {pl[i]}")
                if i >= 2: A(f"v_pk_add_f32 {u[i&1]}, {u[i&1]}, {d}")
            A(f"v_pk_add_f32 {u[0]}, {u[0]}, {u[1]}")
            A(f"v_permlane32_swap_b32 {u[0][0]}, {u[0][1]}\nv_add_f32 {u[0][0]}, {u[0][0]}, {u[0][1]}\nv_mov_b32 {u[0][1]}, {u[0][0]}\nv_permlane32_swap_b32 {u[0][0]}, {u[0][1]}")
            A(f"v_cvt_pk_bf16_f32 {u[1][0]}, {u[0][0]}, {u[0][1]}")
            A(f"s_lshl_b32 {st0}, {self.shp}, 4\ns_add_u32 {st0}, {st0}, {self.srb}\ns_lshl_b32 {st0}, {st0}, 2\ns_add_u32 {st0}, {st0}, {self.sw}\ns_lshl_b32 {st0}, {st0}, 7\ns_add_u32 {st0}, {st0}, {WS_P2}")
            A(f"v_and_b32 {a1}, 127, {a1}\nbuffer_store_dword {u[1][0]}, {a1}, {self.rws}, {st0} offen sc1")
            A(f"v_lshlrev_b32 {zz[0]}, 16, {pz}\nv_and_b32 {zz[1]}, 0xffff0000, {pz}")
            A(f"v_permlane32_swap_b32 {zz[0]}, {zz[1]}\nv_add_f32 {zz[0]}, {zz[0]}, {zz[1]}")
            A(f"v_mov_b32 {zz[1]}, {zz[0]}\nv_permlane16_swap_b32 {zz[0]}, {zz[1]}\nv_add_f32 {zz[0]}, {zz[0]}, {zz[1]}")
            for r in (4, 8): A(f"v_add_f32_dpp {zz[0]}, {zz[0]}, {zz[0]} row_ror:{r} row_mask:0xf bank_mask:0xf")
            A(f"v_mov_b32 {zz[1]}, {zz[0]}\nv_permlane32_swap_b32 {zz[0]}, {zz[1]}\nv_cvt_pk_bf16_f32 {z2[0]}, {zz[0]}, {zz[1]}")
            A(self.p2z_addr(st1))
            A(f"v_and_b32 {a2}, 12, {a2}\nbuffer_store_dword {z2[0]}, {a2}, {self.rws}, {st1} offen sc1")
            self.tmp_rel = [u, zz, z2]
        A("s_waitcnt vmtag(q2) lgkmcnt(0)\ns_barrier")
        A(rd(0))
        at = self.o['a1_at']
        for s in range(16):
            if s in (3, 7): A("s_waitcnt lgkmcnt(0)\ns_barrier")
            if s == 11: A("s_waitcnt vmtag(q3) lgkmcnt(0)\ns_barrier")
            if s == 15: A("s_waitcnt lgkmcnt(0)\ns_barrier")
            D = []
            if s == 0: D = self.issue_q(3)
            if s == 1: D = self.ut_load()
            if s in (3, 7, 11): D = self.issue_wo(self.QSLOT[s >> 2])
            if s == at - 3: D = D + a1_addr()
            if s == at - 2: D = D + a1_load()
            self.weave(mm(s), rd(s + 1) if s < 15 else [], D, dper=1)
            if s == 4: self.ut_store()
            if s == at:
                self.spin("a1", lambda: A(a1_load()), a1_check)
                A(self.blk(a1_reduce)); V.release(self.tmp_rel)
        V.release(aq, wf, pl, pz, a1, a2, self.vw, self.atw); self.S.release(s1, s1b, s1z)

    def ut_load(self):
        V = self.V; st0 = self.st0
        self.utr = [V.alloc(4, 4) for _ in range(4)]; self.uta = V.alloc()
        x = mk(f"s_lshl_b32 {st0}, {self.shp}, 4\ns_add_u32 {st0}, {st0}, {self.srb}\ns_lshl_b32 {st0}, {st0}, 14\ns_add_u32 {st0}, {st0}, {self.swl}\nv_lshlrev_b32 {self.uta}, 4, {self.lane}")
        return x + [I(f"buffer_load_dwordx4 {self.utr[i]}, {self.uta}, {self.rws}, {st0} offen offset:{1024*i} sc1") for i in range(4)]

    def ut_store(self):
        A, V = self.A, self.V
        self.sut = self.S.alloc(); z = V.alloc(2, 2); t0 = self.t[0]
        A(f"s_mul_i32 {self.sut}, {self.sw}, {UT_W}\ns_add_u32 {self.sut}, {self.sut}, {L_UP}\nv_mov_b32 {z[0]}, 0\nv_mov_b32 {z[1]}, 0")
        A(f"v_lshl_add_u32 {t0}, {self.lane}, 3, {self.sut}\nv_add_u32 {self.uta}, {self.sut}, {self.uta}\nds_write_b64 {t0}, {z}")
        for i in range(4): A(f"ds_write_b128 {self.uta}, {self.utr[i]} offset:{480 + 1024*i}")
        V.release(self.utr, self.uta, z)

    def q_epi(self):
        A, V = self.A, self.V
        t0, t1, t2, t3 = self.t; lane = self.lane; st0, st1, st2 = self.st0, self.st1, self.st2
        acc = self.accq
        self.eq = eq = [[V.alloc(4, 4) for u in range(4)] for sg in range(2)]
        ld = [V.alloc(4, 4) for _ in range(3)]; a1 = V.alloc(); a2 = V.alloc()
        s2 = self.S.alloc(); s2z = self.S.alloc()

        def load():
            A(f"buffer_load_dwordx4 {ld[0]}, {a1}, {self.rws}, {s2} offen sc1\nbuffer_load_dwordx4 {ld[1]}, {a1}, {self.rws}, {s2} offen offset:1024 sc1")
            A(f"buffer_load_dwordx4 {ld[2]}, {a2}, {self.rws}, {s2z} offen sc1")

        def part():
            P = []
            for h in range(2):
                for t in range(2):
                    qf = eq[0][2*h+t]; self.pack2(qf, acc[2*h][t], acc[2*h+1][t])
                    for ft in range(2): A(f"{MF} {acc[2*h+ft][t]}, {self.wphi[h][ft]}, {qf}, 0")
                    P.append((acc[2*h][t], acc[2*h+1][t]))
            E = self.dual_exp(P)
            for sg in range(2):
                for u in range(4): self.pack2(eq[sg][u], *E[sg][u])
            self.tmp_rel = [E[1]]
        b = self.blk(part); V.release(self.tmp_rel)
        A(f"s_lshl_b32 {s2z}, {self.shp}, 2\ns_add_u32 {s2z}, {s2z}, {self.sw}\ns_lshl_b32 {s2}, {s2z}, 11\ns_add_u32 {s2}, {s2}, {WS_P2}\ns_lshl_b32 {s2z}, {s2z}, 7\ns_add_u32 {s2z}, {s2z}, {WS_P2Z}")
        A(f"v_lshlrev_b32 {a1}, 4, {lane}\nv_and_b32 {a2}, 48, {lane}")
        k = len(b) // 3
        A(b[:k]); load(); A(b[k:])

        def check():
            A(f"v_max3_u32 {t0}, {ld[0][0]}, {ld[0][1]}, {ld[0][2]}\nv_max3_u32 {t1}, {ld[0][3]}, {ld[1][0]}, {ld[1][1]}\nv_max3_u32 {t0}, {t0}, {ld[1][2]}, {ld[1][3]}")
            A(f"v_max3_u32 {t1}, {t1}, {ld[2][0]}, {ld[2][1]}\nv_max3_u32 {t0}, {t0}, {ld[2][2]}, {ld[2][3]}\nv_max_u32 {t0}, {t0}, {t1}\nv_cmp_eq_u32 vcc, -1, {t0}")
        self.stamp()
        self.spin("a2", load, check)
        self.stamp()
        A(f"v_and_b32 {t0}, 1, {lane}\nv_cmp_eq_u32 vcc, 0, {t0}\nv_mov_b32 {t1}, 0x3f803f80")
        for k in range(4): A(f"v_cndmask_b32 {ld[2][k]}, {t1}, {ld[2][k]}, vcc")
        self.kvx = (ld, a1, a2); self.S.release(s2, s2z)

    def o_phase(self, xbase):
        A, V = self.A, self.V
        t0, t1, t2, t3 = self.t; lane = self.lane; st0, st1, st2 = self.st0, self.st1, self.st2
        ld, a1, a2 = self.kvx; eq = self.eq
        A(f"s_mul_i32 {st0}, {self.sw}, 3072\ns_add_u32 {st0}, {st0}, {xbase}\nv_add_u32 {a2}, {st0}, {a1}")
        for k in range(3): A(f"ds_write_b128 {a2}, {ld[k]} offset:{1024*k}")
        A(f"s_and_b32 {st0}, {self.sw}, 1\ns_mul_i32 {st1}, {st0}, 3072\ns_add_u32 {st1}, {st1}, {xbase}\nv_add_u32 {t0}, {st1}, {a1}")
        A(f"s_xor_b32 {st1}, {st0}, 1\ns_mul_i32 {st1}, {st1}, 3072\ns_add_u32 {st1}, {st1}, {xbase}\nv_add_u32 {t1}, {st1}, {a1}")
        A("s_waitcnt lgkmcnt(0)\ns_barrier")
        V.release(self.accq, self.wphi)

        def part():
            kv = [[[V.alloc(4, 4) for k in range(3)] for sg in range(2)] for h in range(2)]
            for h in range(2):
                for k in (2, 0, 1):
                    for sg in range(2): A(f"ds_read_b128 {kv[h][sg][k]}, {(t0, t1)[h]} offset:{sg*6144 + 1024*k}")
            A(f"s_lshl_b32 {st1}, {self.shp}, 1\ns_add_u32 {st1}, {st1}, {st0}\ns_lshl_b32 {st1}, {st1}, 10\ns_add_u32 {st1}, {st1}, {self.skx}\ns_add_u32 {st1}, {st1}, {WS_O}")
            so = [[self.S.alloc() for t in range(2)] for h in range(2)]
            A(f"s_mov_b32 {so[0][0]}, {st1}\ns_add_u32 {so[0][1]}, {st1}, 32768\ns_xor_b32 {so[1][0]}, {so[0][0]}, 1024\ns_xor_b32 {so[1][1]}, {so[0][1]}, 1024")
            rel = [kv]
            for h in range(2):
                for t in range(2):
                    u = 2 * h + t
                    N = [[V.alloc(4, 4) for k in range(3)] for sg in range(2)]
                    for k in (2, 0, 1):
                        for sg in range(2): A(f"{MF} {N[sg][k]}, {kv[h][sg][k]}, {eq[sg][u]}, 0")
                    p, m = N[0][2], N[1][2]
                    A(f"v_rcp_f32 {p[1]}, {p[1]}\nv_rcp_f32 {m[1]}, {m[1]}\nv_fmaak_f32 {p[0]}, {p[0]}, {p[1]}, {hex(f32(1e-6))}\nv_fmac_f32 {p[0]}, {m[0]}, {m[1]}")
                    A(f"v_rcp_f32 {p[0]}, {p[0]}\nv_mul_f32 {p[2]}, {p[1]}, {p[0]}\nv_mul_f32 {p[3]}, {m[1]}, {p[0]}")
                    for k in range(2):
                        for q in range(2):
                            x, y = N[0][k][2*q:2*q+2], N[1][k][2*q:2*q+2]
                            A(f"v_pk_mul_f32 {x}, {x}, {p[2:4]} op_sel:[0,0] op_sel_hi:[1,0]\nv_pk_fma_f32 {x}, {y}, {p[2:4]}, {x} op_sel:[0,1,0] op_sel_hi:[1,1,1]")
                    self.pack2(m, N[0][0], N[0][1])
                    A(f"buffer_store_dwordx4 {m}, {a1}, {self.rws}, {so[h][t]} offen sc1", tag="ost")
                    rel.append(N)
            self.tmp_rel = rel; self.S.release(so)
        A(self.blk(part)); V.release(self.tmp_rel, ld, a1, a2, eq)

    def conv(self):
        A, V = self.A, self.V
        t0, t1, t2, t3 = self.t; lane = self.lane; st0, st1, st2 = self.st0, self.st1, self.st2
        ska, sut = self.ska, self.sut
        acc = [V.alloc(4, 4) for T in range(8)]
        au = V.alloc(); ag = V.alloc(); at = V.alloc(2, 1)
        first = [True] * 8

        def mac(T, a, b):
            A(f"{MF} {acc[T]}, {a}, {b}, {'0' if first[T] else acc[T]}"); first[T] = False
        uoff = lambda q: 480 + 64 * q - 32

        def part1():
            mk_ = [V.alloc(4, 4) for _ in range(7)]
            A(f"v_lshlrev_b32 {t0}, 4, {lane}\nv_add_u32 {t1}, 4096, {t0}")
            for k in range(7): A(f"global_load_dwordx4 {mk_[k]}, {t0 if k < 4 else t1}, {self.ptab} offset:{1024*(k&3)}", lat=120)
            A(f"v_and_b32 {t2}, 15, {lane}\nv_lshrrev_b32 {t3}, 4, {lane}\nv_lshlrev_b32 {au}, 5, {t2}\nv_lshl_add_u32 {au}, {t3}, 4, {au}\nv_add_u32 {au}, {sut}, {au}")
            A(f"v_lshlrev_b32 {ag}, 2, {t3}\nv_sub_u32 {ag}, {ag}, {t2}\nv_lshl_add_u32 {ag}, {ag}, 2, {ska}\nv_add_u32 {ag}, {KA_G2A}, {ag}")
            x = V.alloc(); y = V.alloc()
            A(f"v_lshlrev_b32 {x}, 3, {t3}\nv_sub_u32 {x}, {x}, {t2}\nv_lshl_add_u32 {x}, {x}, 1, {ska}\nv_and_b32 {y}, 1, {t2}\nv_mul_u32_u24 {y}, {KA_B + 2}, {y}")
            A(f"v_sub_u32 {x}, {x}, {y}\nv_add_u32 {at[0]}, {KA_B + 1056 - 1024}, {x}\nv_add_u32 {at[1]}, 512, {at[0]}")
            G2 = [[V.alloc(4, 4) for D in range(3)] for ab in range(2)]; G3 = [V.alloc(4, 4) for D in range(4)]

            def rg(d, o):
                A(f"ds_read2_b32 {d[0:2]}, {ag} offset0:{o} offset1:{o+1}\nds_read2_b32 {d[2:4]}, {ag} offset0:{o+2} offset1:{o+3}")
            for ab in range(2):
                for D in range(3): rg(G2[ab][D], ab * 64 + 79 - 16 * (D + 2))
            for D in range(4): rg(G3[D], (KA_G3 - KA_G2A) // 4 + 127 - 16 * (D + 4))
            A(f"v_mov_b32 {y}, {ska}\nds_read_u16 {x}, {y} offset:{KA_G2B + 66}\nv_lshl_or_b32 {x}, {x}, 16, {x}")
            for k in range(4): A(f"v_and_b32 {mk_[6][k]}, {mk_[6][k]}, {x}")
            U = [[V.alloc(4, 4) for k in range(2)] for b in range(3)]
            Wd = [[V.alloc(4, 4) for k in range(6)] for b in range(2)]
            Wf = [[V.alloc(4, 4) for k in range(3)] for b in range(2)]
            for Tj in range(6):
                u0, u1 = U[Tj % 3]; wd = Wd[Tj & 1]; wf = Wf[Tj & 1]
                A(f"ds_read_b128 {u0}, {au} offset:{uoff(8*Tj)}\nds_read_b128 {u1}, {au} offset:{uoff(8*Tj) - 16}")
                nty = 6 if Tj < 4 else 4
                for k in range(nty): A(f"{MF} {wd[k]}, {u1 if k in (3, 5) else u0}, {mk_[k]}, 0")
                if Tj < 4: mac(Tj + 4, mk_[6], u0)
                for p in range(nty // 2):
                    for r in range(4): A(f"v_cvt_pk_bf16_f32 {wf[p][r]}, {wd[2*p][r]}, {wd[2*p+1][r]}")
                for D in range(3):
                    if Tj + D + 2 < 8:
                        for ab in range(2): mac(Tj + D + 2, wf[ab], G2[ab][D])
                for D in range(4):
                    if Tj + D + 4 < 8: mac(Tj + D + 4, wf[2], G3[D])
            self.tmp_rel = [mk_, x, y, G2, G3, U, Wd, Wf]
        A(self.blk(part1)); V.release(self.tmp_rel)
        A(self.flag_addr(st1))
        A(f"v_mov_b32 {t0}, {st1}\nv_mov_b32 {t1}, 0\ns_waitcnt vmtag(ost)\nbuffer_store_dword {t1}, {t0}, {self.rws}, 0 offen sc1")

        def part2():
            Tp = [V.alloc(4, 4) for s in range(17)]
            order = [0, 8, 16, 7, 15, 6, 14, 5, 13, 4, 12, 3, 11, 2, 10, 1, 9]
            NU = 10
            U = [V.alloc(4, 4) for _ in range(NU)]
            n = 0
            for res in (0, 7, 6, 5, 4, 3, 2, 1):
                ss = [s for s in range(17) if s % 8 == res]
                for s in ss:
                    o = 16 * (16 - s); b = int(o >= 128); o -= 128 * b
                    A(f"ds_read2_b32 {Tp[s][0:2]}, {at[b]} offset0:{o} offset1:{o+1}\nds_read2_b32 {Tp[s][2:4]}, {at[b]} offset0:{o+2} offset1:{o+3}")
                for q in range(-7, 57):
                    if (-q) % 8 != res: continue
                    u = U[n % NU]; n += 1
                    A(f"ds_read_b128 {u}, {au} offset:{uoff(q)}", mr=['u'])
                    for s in ss:
                        T = (q + s) // 8
                        if T < 8: mac(T, Tp[s], u)
            A(f"v_and_b32 {t2}, 15, {lane}\nv_lshrrev_b32 {t3}, 4, {lane}\nv_lshlrev_b32 {t2}, 5, {t2}\nv_lshl_add_u32 {t2}, {t3}, 3, {t2}\nv_add_u32 {t2}, {sut}, {t2}")
            for T in range(8):
                A(f"v_cvt_pk_bf16_f32 {acc[T][0]}, {acc[T][0]}, {acc[T][1]}\nv_cvt_pk_bf16_f32 {acc[T][1]}, {acc[T][2]}, {acc[T][3]}")
                A(f"ds_write_b64 {t2}, {acc[T][0:2]} offset:{512*T}", mw=['u'])
            A(f"v_bfe_u32 {t0}, {lane}, 2, 2\nv_mul_u32_u24 {t0}, {UT_W}, {t0}\nv_lshl_add_u32 {t0}, {t3}, 5, {t0}\nv_and_b32 {t1}, 3, {lane}\nv_lshl_add_u32 {t0}, {t1}, 3, {t0}")
            A(f"s_lshr_b32 {st0}, {self.swl}, 2\ns_add_u32 {st0}, {st0}, {L_UP}\nv_add_u32 {ag}, {st0}, {t0}\nv_lshlrev_b32 {at[0]}, 12, {lane}")
            A(f"s_lshl_b32 {st0}, {self.shp}, 4\ns_add_u32 {st0}, {st0}, {self.srb}\ns_lshl_b32 {st0}, {st0}, 3\ns_lshl_b32 {st1}, {self.sw}, 21\ns_add_u32 {st0}, {st0}, {st1}\ns_add_u32 {st0}, {st0}, 2048")
            self.tmp_rel = [Tp, U]
        b = self.blk(part2, keep_mfma_order=True)
        self.conv_mid(b); V.release(self.tmp_rel)
        A("s_waitcnt vmtag(wo) lgkmcnt(0)\ns_barrier")
        for i in range(8): A(f"ds_read_b64_tr_b16 {acc[i][0:2]}, {ag} offset:{128*i}")
        self.ystore = []
        for i in range(8):
            self.ystore += mk(f"buffer_store_dwordx2 {acc[i][0:2]}, {at[0]}, {self.rout}, {st0} offen")
            if i < 7: self.ystore += mk(f"s_add_u32 {st0}, {st0}, {64*4096}")
        A(self.ystore)
        V.release(acc, au, ag, at)

    def conv_mid(self, b):
        A, V = self.A, self.V
        lane = self.lane
        fl = V.alloc(); fa = V.alloc(); self.ao = ao = V.alloc(); sf = self.S.alloc(); so = self.S.alloc()
        n = len(b); k1 = int(n * self.o.get('poll_at', 0.35)); k2 = int(n * self.o.get('chk_at', 0.75))
        A(f"s_lshl_b32 {so}, {self.srb2}, 2\ns_add_u32 {so}, {so}, {self.sw}\ns_lshl_b32 {sf}, {so}, 6\ns_add_u32 {sf}, {sf}, {WS_FL}\ns_lshl_b32 {so}, {so}, 16\ns_add_u32 {so}, {so}, {WS_O}")
        A(f"v_and_b32 {fa}, 15, {lane}\nv_lshlrev_b32 {fa}, 2, {fa}\nv_lshlrev_b32 {ao}, 4, {lane}")
        load = lambda: A(f"buffer_load_dword {fl}, {fa}, {self.rws}, {sf} offen sc1")
        A(b[:k1]); load(); A(b[k1:k2])
        self.stamp()
        self.spin("fb", load, lambda: A(f"v_cmp_ne_u32 vcc, 0, {fl}"))
        self.stamp()
        L = []
        so2 = sf
        L += mk(f"s_add_u32 {so2}, {so}, 32768")
        for hq in range(8):
            for hh in range(4):
                for t in range(2):
                    h = 4 * hq + hh
                    L += mk(f"buffer_load_dwordx4 {Rg('a', h*8 + t*4, 4)}, {ao}, {self.rws}, {(so, so2)[t]} offen offset:{1024*hh} sc1")
            if hq < 7: L += mk(f"s_add_u32 {so}, {so}, 4096\ns_add_u32 {so2}, {so2}, 4096")
        npre = self.o.get('opre', 24)
        pre = []
        while sum(i.kind == 'vmem' for i in pre) < npre: pre.append(L.pop(0))
        rest = b[k2:]; step = max(1, len(rest) // len(pre))
        for k, i in enumerate(rest):
            A(i)
            if pre and k % step == 0: A(pre.pop(0))
        A(pre)
        self.oloads = L
        V.release(fl, fa)

    def gemm2(self):
        A, V = self.A, self.V
        t0, t1, t2, t3 = self.t; lane = self.lane; st0, st1 = self.st0, self.st1
        aw = V.alloc(8, 1)
        A(self.tr_addr(aw[0], 'o'))
        for k in range(1, 4): A(f"v_xor_b32 {aw[k]}, {32*k}, {aw[0]}")
        for k in range(4): A(f"v_add_u32 {aw[4+k]}, 65536, {aw[k]}")
        acc = [[V.alloc(4, 4) for t in range(2)] for nt in range(4)]
        wf = [[[V.alloc(4, 4) for ks in range(2)] for nt in range(4)] for b in range(2)]

        def rd(s):
            base = s * 8192; hi = int(base >= 65536); off = base - 65536 * hi
            return [I(f"ds_read_b64_tr_b16 {wf[s&1][nt][ks][2*h:2*h+2]}, {aw[4*hi+nt]} offset:{off + ks*4096 + h*2048}")
                    for nt in range(4) for ks in range(2) for h in range(2)]

        def mm(s):
            return [I(f"{MF} {acc[nt][t]}, {wf[s&1][nt][ks]}, {Rg('a', (2*s+ks)*8 + t*4, 4)}, {'0' if s == 0 and ks == 0 else acc[nt][t]}")
                    for nt in range(4) for t in range(2) for ks in range(2)]
        A(rd(0))
        L = self.oloads
        for s in range(16):
            D = []
            while L and sum(i.kind == 'vmem' for i in D) < 5: D.append(L.pop(0))
            self.weave(mm(s), rd(s + 1) if s < 15 else [], D, dper=3)
        assert not L

        def epi():
            A(f"v_and_b32 {t0}, 15, {lane}\nv_lshlrev_b32 {t0}, 12, {t0}\nv_bfe_u32 {t1}, {lane}, 4, 1\nv_lshl_add_u32 {t0}, {t1}, 5, {t0}\nv_lshrrev_b32 {t1}, 5, {lane}\nv_lshl_add_u32 {t0}, {t1}, 4, {t0}")
            A(f"s_lshl_b32 {st0}, {self.srb2}, 2\ns_add_u32 {st0}, {st0}, {self.sw}\ns_lshl_b32 {st0}, {st0}, 17\ns_lshl_b32 {st1}, {self.scb2}, 7\ns_add_u32 {st0}, {st0}, {st1}\ns_add_u32 {st1}, {st0}, 65536")
            for pr in range(2):
                for t in range(2):
                    d = wf[0][2*pr + t][0]
                    self.pack2(d, acc[2*pr][t], acc[2*pr+1][t])
                    A(f"v_permlane16_swap_b32 {d[0]}, {d[2]}\nv_permlane16_swap_b32 {d[1]}, {d[3]}")
                    A(f"buffer_store_dwordx4 {d}, {t0}, {self.rout}, {(st0, st1)[t]} offen offset:{64*pr}")
        A(self.blk(epi))
        V.release(aw, acc, wf, self.ao)

    def build(self):
        A, o = self.A, self.o
        self.prologue()
        A(self.blk(self.kgen))
        if o['dump'] == 'kg': self.dump(self.kgF)
        self.clears()
        self.utrans()
        self.stamp()
        self.kv_gemm()
        self.stamp()
        self.kv_epi()
        self.stamp()
        self.q_gemm()
        self.stamp()
        self.q_epi()
        self.o_phase_wrap()
        self.stamp()
        self.conv()
        self.stamp()
        self.gemm2()
        if o['stamps']:
            self.stamp()
            A("s_waitcnt vmcnt(0)")
            self.stamp()
            t0, t1 = self.t[:2]
            A(f"s_lshl_b32 {self.st0}, s2, 2\ns_add_u32 {self.st0}, {self.st0}, {self.sw}\ns_lshl_b32 {self.st0}, {self.st0}, 6\ns_add_u32 {self.st0}, {self.st0}, {WS_STAMP}\nv_mov_b32 {t0}, {self.st0}")
            for k in range(self.nstamp): A(f"v_mov_b32 {t1}, {self.sst[2*k]}\nbuffer_store_dword {t1}, {t0}, {self.rws}, 0 offen offset:{4*k}")
        if o['stamps'] and o.get('dbgstamp') is not None:
            t0, t1 = self.t[:2]
            A(f"s_lshl_b32 {self.st0}, s2, 2\ns_add_u32 {self.st0}, {self.st0}, {self.sw}\ns_cmp_eq_u32 {self.st0}, {o['dbgstamp']*4}\ns_cbranch_scc0 L_end\nv_mov_b32 {t0}, 0")
            for k in range(1, self.nstamp): A(f"s_sub_u32 {self.st0}, {self.sst[2*k]}, {self.sst[0]}\nv_mov_b32 {t1}, {self.st0}\nglobal_store_dword {t0}, {t1}, {self.pdbg} offset:{4*k}")
        A("L_end:\ns_endpgm")
        body = finalize(self.c)
        self.nbytes = align_stream.bytes; self.nbad = align_stream.bad
        tail = finalize(self.tailc, align=False)
        tab = mask_table()
        data = ".p2align 8\nL_tab:\n" + "".join(".long " + ",".join(hex(v) for v in tab[k:k+8]) + "\n" for k in range(0, len(tab), 8)) + "L_codeend:\n"
        hdr = open('concat_heads__linear_kernel_hedgehog__ssm_conv_s4d__prompt.s.ref').read().split('; Override launch')[0]
        s = hdr + f"; @launch grid=(256,1,1) block=(256,1,1) lds={LDS_BYTES}\n"
        s += '.amdgcn_target "amdgcn-amd-amdhsa--gfx950"\n.text\n' + f".globl {KNAME}\n.p2align 8\n.type {KNAME},@function\n{KNAME}:\n"
        s += text_of(body) + text_of(tail) + data
        s += f""".section .rodata,"a"
.p2align 6
.amdhsa_kernel {KNAME}
  .amdhsa_next_free_vgpr 512
  .amdhsa_next_free_sgpr 102
  .amdhsa_accum_offset 256
  .amdhsa_group_segment_fixed_size 0
  .amdhsa_kernarg_size 112
  .amdhsa_user_sgpr_count 2
  .amdhsa_user_sgpr_kernarg_segment_ptr 1
  .amdhsa_system_sgpr_workgroup_id_x 1
.end_amdhsa_kernel
"""
        return s

    def o_phase_wrap(self):
        self.o_phase(self.QSLOT[3] * SLOT)
        self.A("s_barrier")
        self.A(self.issue_wo(self.QSLOT[3]))
        self.V.release(self.vo)


if __name__ == "__main__":
    import json
    g = G(**(json.loads(sys.argv[2]) if len(sys.argv) > 2 else {})); s = g.build()
    open(sys.argv[1] if len(sys.argv) > 1 else "k.s", "w").write(s)
    print("code bytes", g.nbytes, "straddles", g.nbad, "vgpr hi", g.V.hi, "sgpr hi", g.S.hi)
```

```python
import sys, json, gen
K = gen.KNAME
def desc(name, v=64): return f""".p2align 6
.amdhsa_kernel {name}
  .amdhsa_next_free_vgpr {v}
  .amdhsa_next_free_sgpr 102
  .amdhsa_accum_offset {v}
  .amdhsa_group_segment_fixed_size 0
  .amdhsa_kernarg_size 112
  .amdhsa_user_sgpr_count 2
  .amdhsa_user_sgpr_kernarg_segment_ptr 1
  .amdhsa_system_sgpr_workgroup_id_x 1
.end_amdhsa_kernel
"""
def toucher(stride_log, full):
    sizes = {0:4<<20,1:6<<20,2:65536,3:2<<20,4:4<<20,5:262144,6:262144,7:262144,8:262144,9:2048,10:2048,11:8<<20,13:12<<20}
    L = ["s_cmp_ge_u32 s2, 256","s_cbranch_scc1 T_end"]
    for i,(b,n) in enumerate(sizes.items()): L.append(f"s_load_dwordx2 s[{8+4*i}:{9+4*i}], s[0:1], {8*b}")
    L.append("s_waitcnt lgkmcnt(0)")
    if full: L += ["s_lshl_b32 s3, s2, 8","v_add_u32 v1, s3, v0","v_lshlrev_b32 v1, 7, v1"]
    else: L += [f"v_lshlrev_b32 v1, {stride_log}, v0"]
    for i,(b,n) in enumerate(sizes.items()):
        L += [f"s_mov_b32 s{10+4*i}, {n}", f"s_mov_b32 s{11+4*i}, 0x20000"]
        if full and b >= 11: continue
        L.append(f"buffer_load_dword v{2+i}, v1, s[{8+4*i}:{11+4*i}], 0 offen")
    L += ["s_waitcnt vmcnt(0)","T_end:","s_endpgm"]
    return "\n".join(L)+"\n"
def mk(out, seq, **kw):
    s = gen.G(**kw).build()
    line = f"; @launch grid=(256,1,1) block=(256,1,1) lds={gen.LDS_BYTES}\n"
    ll = ""; code = ""; ds = ""; seen=set()
    for k in seq:
        if k == 'main': ll += f"; @launch kernel={K} grid=(256,1,1) block=(256,1,1) lds={gen.LDS_BYTES}\n"; continue
        ll += f"; @launch kernel={k}_kernel grid=(256,1,1) block=(256,1,1) lds=0\n"
        if k in seen: continue
        seen.add(k)
        body = {"empty":"s_endpgm\n", "tlb":toucher(16,0), "full":toucher(0,1)}[k]
        code += f".globl {k}_kernel\n.p2align 8\n.type {k}_kernel,@function\n{k}_kernel:\n" + body
        ds += desc(k+"_kernel")
    s = s.replace(line, ll).replace('.section .rodata,"a"', code + '.section .rodata,"a"') + ds
    open(out,"w").write(s)
w = dict(win=16, ra=2, rc=4)
mk("v/a.s", ['main'], **w); mk("v/b.s", ['main','main'], **w); mk("v/c.s", ['empty','main'], **w); mk("v/d.s", ['tlb','main'], **w); mk("v/e.s", ['full','main'], **w); mk("v/f.s", ['main','main','main'], **w)
```
